```python
import torch

def _softmax(x, axis=-1):
    return torch.softmax(x, dim=axis)
def _gelu(x):
    return torch.nn.functional.gelu(x, approximate="tanh")
def _silu(x):
    return torch.nn.functional.silu(x)
def _sigmoid(x):
    return torch.sigmoid(x)
def _layernorm(x, axis=-1, eps=1e-5):
    m = x.mean(dim=axis, keepdim=True)
    v = x.var(dim=axis, keepdim=True, unbiased=False)
    return (x - m) / torch.sqrt(v + eps)
def _scatter_add(tgt, idx, src, axis=0):
    return tgt.clone().index_add_(axis, idx, src)
def _segment_sum(src, seg, n):
    out = torch.zeros((n,) + src.shape[1:], dtype=src.dtype)
    return out.index_add_(0, seg, src)
def _pad(x, pw):
    flat = tuple(v for pair in reversed(pw) for v in pair)
    return torch.nn.functional.pad(x, flat)

kernel_name = 'standalone__mha_block_cached__near_ridge'

def setup_inputs():

    _w = (lambda a: (lambda t: t.to(torch.bfloat16) if t.is_floating_point() else t)(torch.as_tensor(a)))
    B, Sq, D = 8, 144, 576
    H, Sk, Dh = 32, 512, 128
    return {
        "x": _w((lambda *s: torch.randn(*s, dtype=torch.bfloat16) * 0.8)(B, Sq, D)),
        "k_cache": _w((lambda *s: torch.randn(*s, dtype=torch.bfloat16) * 0.8)(B, H, Sk, Dh)),
        "v_cache": _w((lambda *s: torch.randn(*s, dtype=torch.bfloat16) * 0.05)(B, H, Sk, Dh)),
        "wq": _w((lambda *s: torch.randn(*s, dtype=torch.bfloat16) * 0.8)(D, H * Dh) * (D ** -0.5)),
        "wo": _w((lambda *s: torch.randn(*s, dtype=torch.bfloat16) * 0.05)(H * Dh, D) * ((H * Dh) ** -0.5)),
    }

def reference(x, k_cache, v_cache, wq, wo):
    B, Sq, D = x.shape
    H, Dh = 32, 128
    q = (lambda x, *d: x.permute(*d))((x @ wq).reshape(B, Sq, H, Dh), 0, 2, 1, 3)
    scores = torch.einsum("bhqd,bhkd->bhqk", q, k_cache) * (Dh ** -0.5)
    p = _softmax(scores, axis=-1)
    o = torch.einsum("bhqk,bhkd->bhqd", p, v_cache)
    return (lambda x, *d: x.permute(*d))(o, 0, 2, 1, 3).reshape(B, Sq, H * Dh) @ wo
```

```python
import re

def V(a, n=1):
    return f"v{a}" if n == 1 else f"v[{a}:{a+n-1}]"
def S(a, n=1):
    return f"s{a}" if n == 1 else f"s[{a}:{a+n-1}]"
def vs(a, n=1):
    return [f"v{i}" for i in range(a, a + n)]
def ss(a, n=1):
    return [f"s{i}" for i in range(a, a + n)]

class Em:
    def __init__(self):
        self.lines = []
        self.hist = []
        self.lgkm = []
        self.vm = []
        self.nnop = 0
    def raw(self, t):
        self.lines.append(t)
    def comment(self, t):
        self.lines.append("    ; " + t)
    def label(self, name):
        self.nop(15)
        self.lines.append(name + ":")
        self.hist = []
    def nop(self, n):
        while n > 0:
            k = min(n, 16)
            self.lines.append(f"    s_nop {k-1}")
            self.hist.append(dict(kind='nop', w=set(), r=set(), c=set(), ws=k))
            n -= k
            self.nnop += 1
    def _need(self, p, kind, w, r, c):
        need = 0
        pk = p['kind']
        allr = r | c
        if pk in ('valu', 'trans', 'perm'):
            pw = p['w']
            pv = {x for x in pw if x[0] == 'v' and x != 'vcc'}
            psg = pw - pv
            if kind.startswith('mfma') and (pv & allr): need = max(need, 2)
            if kind == 'perm' and (pv & (r | w)): need = max(need, 2)
            if kind == 'rfl' and (pv & r): need = max(need, 1)
            if pk == 'trans' and kind in ('valu', 'perm', 'trans') and (pv & r): need = max(need, 1)
            if psg & r:
                if kind in ('valu', 'trans', 'perm'): need = max(need, 2)
                if kind in ('vmem', 'dma', 'store'): need = max(need, 5)
                if kind == 'salu': need = max(need, 2)
        if pk == 'rfl':
            if p['w'] & r:
                if kind in ('valu', 'trans', 'perm'): need = max(need, 2)
                if kind in ('vmem', 'dma', 'store'): need = max(need, 5)
                if kind == 'salu': need = max(need, 2)
        if pk.startswith('mfma'):
            P = int(pk[4:])
            big = {4: 8, 8: 12, 16: 20}[P]
            ovl = {4: 6, 8: 10, 16: 18}[P]
            war = {4: 3, 8: 7, 16: 15}[P]
            D = p['w']
            if kind.startswith('mfma'):
                if D & r: need = max(need, big)
                if D & (c | w):
                    if c == D and kind == pk: pass
                    else: need = max(need, ovl)
            else:
                if D & (r | w): need = max(need, big)
                if kind in ('valu', 'trans', 'perm') and (p['c'] & w): need = max(need, war)
        if pk == 'salu' and 'm0' in p['w'] and kind == 'dma': need = max(need, 1)
        if pk == 'store' and kind in ('valu', 'trans', 'perm', 'lds', 'vmem') and (p['r'] & w): need = max(need, 2)
        return need
    def ins(self, text, kind, w=(), r=(), c=()):
        w, r, c = set(w), set(r), set(c)
        dist = 0
        pad = 0
        for p in reversed(self.hist[-24:]):
            need = self._need(p, kind, w, r, c)
            if need > dist:
                pad = max(pad, need - dist)
            dist += p['ws']
            if dist >= 24: break
        if pad:
            self.nop(pad)
        self.lines.append("    " + text)
        self.hist.append(dict(kind=kind, w=w, r=r, c=c, ws=1))
    def salu(self, text, w=(), r=()):
        self.ins(text, 'salu', w, r)
    def valu(self, text, w=(), r=()):
        self.ins(text, 'valu', w, r)
    def trans(self, text, w=(), r=()):
        self.ins(text, 'trans', w, r)
    def mfma(self, shape, d, a, b, cin=None):
        if shape == '32':
            nm, nd, na, P = "v_mfma_f32_32x32x16_bf16", 16, 4, 8
        elif shape == '16':
            nm, nd, na, P = "v_mfma_f32_16x16x32_bf16", 4, 4, 4
        else:
            nm, nd, na, P = "v_mfma_f32_16x16x16_bf16", 4, 2, 4
        if cin is None:
            ct, cs = V(d, nd), vs(d, nd)
        elif cin == 0:
            ct, cs = "0", []
        else:
            ct, cs = V(cin, nd), vs(cin, nd)
        self.ins(f"{nm} {V(d,nd)}, {V(a,na)}, {V(b,na)}, {ct}", f"mfma{P}", vs(d, nd), vs(a, na) + vs(b, na), cs)
    def ds_read(self, op, d, n, addr, off, tag):
        self.ins(f"{op} {V(d,n)}, {V(addr)} offset:{off}", 'lds', vs(d, n), [f"v{addr}"])
        self.lgkm.append(tag)
    def ds_write(self, op, addr, s, n, off, tag='w'):
        self.ins(f"{op} {V(addr)}, {V(s,n)} offset:{off}", 'lds', [], [f"v{addr}"] + vs(s, n))
        self.lgkm.append(tag)
    def wait_lgkm(self, tag=None):
        if tag is None:
            if self.lgkm:
                self.ins("s_waitcnt lgkmcnt(0)", 'wait')
                self.lgkm = []
            return
        idx = [i for i, t in enumerate(self.lgkm) if t == tag]
        if not idx: return
        i = idx[-1]
        n = len(self.lgkm) - 1 - i
        if n > 15:
            n = 15
            i = len(self.lgkm) - 1 - 15
        self.ins(f"s_waitcnt lgkmcnt({n})", 'wait')
        self.lgkm = self.lgkm[i + 1:]
    def bload(self, d, n, voff, srd, soff, off, tag):
        op = {1: 'buffer_load_dword', 2: 'buffer_load_dwordx2', 4: 'buffer_load_dwordx4'}[n]
        so = soff if isinstance(soff, str) else (S(soff) if soff is not None else "0")
        rs = [f"v{voff}"] + ss(srd, 4) + ([so] if so != "0" else [])
        self.ins(f"{op} {V(d,n)}, {V(voff)}, {S(srd,4)}, {so} offen offset:{off}", 'vmem', vs(d, n), rs)
        self.vm.append(tag)
    def dma(self, voff, srd, soff, tag, off=0):
        so = S(soff) if soff is not None else "0"
        rs = [f"v{voff}", 'm0'] + ss(srd, 4) + ([so] if so != "0" else [])
        self.ins(f"buffer_load_dwordx4 {V(voff)}, {S(srd,4)}, {so} offen offset:{off} lds", 'dma', [], rs)
        self.vm.append(tag)
    def bstore(self, s, n, voff, srd, soff, off, tag='st'):
        op = {1: 'buffer_store_dword', 2: 'buffer_store_dwordx2', 4: 'buffer_store_dwordx4'}[n]
        so = S(soff) if soff is not None else "0"
        rs = [f"v{voff}"] + ss(srd, 4) + vs(s, n) + ([so] if so != "0" else [])
        self.ins(f"{op} {V(s,n)}, {V(voff)}, {S(srd,4)}, {so} offen offset:{off}", 'store', [], rs)
        self.vm.append(tag)
    def wait_vm(self, tag=None):
        if tag is None:
            if self.vm:
                self.ins("s_waitcnt vmcnt(0)", 'wait')
                self.vm = []
            return
        idx = [i for i, t in enumerate(self.vm) if t == tag]
        if not idx: return
        i = idx[-1]
        n = len(self.vm) - 1 - i
        assert n <= 63
        self.ins(f"s_waitcnt vmcnt({n})", 'wait')
        self.vm = self.vm[i + 1:]
    def barrier(self):
        self.ins("s_barrier", 'salu')
    def text(self):
        return "\n".join(self.lines) + "\n"
```

```python
from em import *
import math
CSC = 128 ** -0.5 * math.log2(math.e)
import struct
def f32bits(x): return struct.unpack('<I', struct.pack('<f', x))[0]

REG = 16384
def Kreg(j): return (2 * (j % 5)) * REG
def Vreg(j): return (2 * (j % 5) + 1) * REG
WQ0 = 6 * REG

def common_prologue(e, name):
    e.raw(f".globl {name}\n.p2align 8\n.type {name},@function\n{name}:")
    e.salu("s_cmp_ge_u32 s2, 256", r=['s2'])
    e.salu(f"s_cbranch_scc1 {name}_done")
    e.salu("s_load_dwordx4 s[4:7], s[0:1], 0", w=ss(4, 4))
    e.salu("s_load_dwordx4 s[24:27], s[0:1], 16", w=ss(24, 4))
    e.salu("s_load_dwordx2 s[28:29], s[0:1], 56", w=ss(28, 2))
    e.salu("s_and_b32 s30, s2, 7"); e.salu("s_lshl_b32 s30, s30, 2")
    e.salu("s_lshr_b32 s31, s2, 3"); e.salu("s_and_b32 s31, s31, 3")
    e.salu("s_add_u32 s30, s30, s31")
    e.salu("s_lshr_b32 s31, s2, 5")
    e.valu("v_and_b32 v1, 63, v0", w=['v1'], r=['v0'])
    e.valu("v_lshrrev_b32 v2, 6, v0", w=['v2'], r=['v0'])
    e.ins("v_readfirstlane_b32 s32, v2", 'rfl', w=['s32'], r=['v2'])
    e.ins("s_waitcnt lgkmcnt(0)", 'wait')
    e.salu("s_mul_i32 s33, s31, 165888")
    e.salu("s_add_u32 s8, s4, s33"); e.salu("s_addc_u32 s9, s5, 0"); e.salu("s_and_b32 s9, s9, 0xffff")
    e.salu("s_mov_b32 s10, 165888"); e.salu("s_mov_b32 s11, 0x00020000")
    e.salu("s_lshl_b32 s33, s31, 5"); e.salu("s_add_u32 s33, s33, s30"); e.salu("s_lshl_b32 s33, s33, 17")
    e.salu("s_add_u32 s12, s6, s33"); e.salu("s_addc_u32 s13, s7, 0"); e.salu("s_and_b32 s13, s13, 0xffff")
    e.salu("s_mov_b32 s14, 131072"); e.salu("s_mov_b32 s15, 0x00020000")
    e.salu("s_add_u32 s16, s24, s33"); e.salu("s_addc_u32 s17, s25, 0"); e.salu("s_and_b32 s17, s17, 0xffff")
    e.salu("s_mov_b32 s18, 131072"); e.salu("s_mov_b32 s19, 0x00020000")
    e.salu("s_lshl_b32 s33, s30, 8")
    e.salu("s_add_u32 s20, s26, s33"); e.salu("s_addc_u32 s21, s27, 0"); e.salu("s_and_b32 s21, s21, 0xffff")
    e.salu(f"s_sub_u32 s22, {576*8192}, s33"); e.salu("s_mov_b32 s23, 0x00020000")
    e.salu("s_mov_b32 s24, s28"); e.salu("s_and_b32 s25, s29, 0xffff")
    e.salu(f"s_mov_b32 s26, {72*128*1024}"); e.salu("s_mov_b32 s27, 0x00020000")
    e.salu(f"s_mov_b32 s34, {f32bits(CSC):#x}")
    e.salu("s_cmp_ge_u32 s32, 4", r=['s32'])
    e.salu(f"s_cbranch_scc1 {name}_aux")

KA, VA = 10, 18
vM, vL, vMC, vAL, vT0, vT1, vKA0, vVA0, vXO, vWQO, vL2 = 22, 23, 24, 25, 26, 27, 28, 29, 30, 31, 9
QF, OA, SB, PB, KF, VF = 32, 64, 128, 192, 208, 224

def gen_main(e):
    e.valu("v_and_b32 v2, 31, v1", w=['v2'], r=['v1'])
    e.valu("v_lshrrev_b32 v3, 5, v1", w=['v3'], r=['v1'])
    e.salu("s_lshl_b32 s33, s32, 5", w=['s33'])
    e.valu("v_add_u32 v4, s33, v2", w=['v4'], r=['v2', 's33'])
    e.valu("v_mul_u32_u24 v4, 1152, v4", w=['v4'], r=['v4'])
    e.valu("v_lshlrev_b32 v5, 4, v3", w=['v5'], r=['v3'])
    e.valu(f"v_add_u32 v{vXO}, v4, v5", w=[f'v{vXO}'], r=['v4', 'v5'])
    e.valu("v_lshrrev_b32 v4, 4, v1", w=['v4'], r=['v1'])
    e.valu("v_lshlrev_b32 v5, 2, v4", w=['v5'], r=['v4'])
    e.valu("v_and_b32 v6, 15, v1", w=['v6'], r=['v1'])
    e.valu("v_xor_b32 v5, v5, v6", w=['v5'], r=['v5', 'v6'])
    e.valu("v_lshlrev_b32 v5, 4, v5", w=['v5'], r=['v5'])
    e.salu("s_lshl_b32 s33, s32, 2", w=['s33'])
    e.valu("v_add_u32 v4, s33, v4", w=['v4'], r=['v4', 's33'])
    e.valu("v_lshlrev_b32 v4, 13, v4", w=['v4'], r=['v4'])
    e.valu(f"v_add_u32 v{vWQO}, v4, v5", w=[f'v{vWQO}'], r=['v4', 'v5'])
    e.valu("v_and_b32 v4, 15, v2", w=['v4'], r=['v2'])
    e.valu("v_xor_b32 v4, v4, v3", w=['v4'], r=['v4', 'v3'])
    e.valu("v_lshlrev_b32 v4, 4, v4", w=['v4'], r=['v4'])
    e.valu("v_lshlrev_b32 v5, 8, v2", w=['v5'], r=['v2'])
    e.valu(f"v_add_u32 v{vKA0}, v4, v5", w=[f'v{vKA0}'], r=['v4', 'v5'])
    e.valu("v_bfe_u32 v4, v1, 4, 1", w=['v4'], r=['v1'])
    e.valu("v_bfe_u32 v5, v1, 2, 2", w=['v5'], r=['v1'])
    e.valu("v_and_b32 v6, 1, v1", w=['v6'], r=['v1'])
    e.valu("v_bfe_u32 v7, v1, 1, 1", w=['v7'], r=['v1'])
    e.valu("v_lshlrev_b32 v4, 1, v4", w=['v4'], r=['v4'])
    e.valu("v_or_b32 v4, v4, v6", w=['v4'], r=['v4', 'v6'])
    e.valu("v_lshlrev_b32 v6, 2, v5", w=['v6'], r=['v5'])
    e.valu("v_xor_b32 v4, v4, v6", w=['v4'], r=['v4', 'v6'])
    e.valu("v_lshlrev_b32 v7, 3, v7", w=['v7'], r=['v7'])
    e.valu("v_lshlrev_b32 v6, 3, v3", w=['v6'], r=['v3'])
    e.valu("v_add_u32 v6, v6, v5", w=['v6'], r=['v6', 'v5'])
    e.valu("v_lshlrev_b32 v6, 8, v6", w=['v6'], r=['v6'])
    e.valu("v_lshlrev_b32 v8, 4, v4", w=['v8'], r=['v4'])
    e.valu("v_add3_u32 v6, v6, v8, v7", w=['v6'], r=['v6', 'v8', 'v7'])
    e.valu(f"v_add_u32 v{VA}, {WQ0}, v6", w=[f'v{VA}'], r=['v6'])
    for T in range(1, 4):
        e.valu(f"v_xor_b32 v{VA+T}, {T<<6}, v{VA}", w=[f'v{VA+T}'], r=[f'v{VA}'])
    e.valu("v_lshlrev_b32 v6, 1, v3", w=['v6'], r=['v3'])
    e.valu("v_xor_b32 v4, v4, v6", w=['v4'], r=['v4', 'v6'])
    e.valu("v_lshlrev_b32 v4, 4, v4", w=['v4'], r=['v4'])
    e.valu("v_lshlrev_b32 v6, 2, v3", w=['v6'], r=['v3'])
    e.valu("v_add_u32 v6, v6, v5", w=['v6'], r=['v6', 'v5'])
    e.valu("v_lshlrev_b32 v6, 8, v6", w=['v6'], r=['v6'])
    e.valu(f"v_add3_u32 v{vVA0}, v6, v4, v7", w=[f'v{vVA0}'], r=['v6', 'v4', 'v7'])
    e.salu("s_lshl_b32 s35, s32, 10"); e.salu(f"s_add_u32 s35, s35, {WQ0}", w=['s35'])
    e.salu("s_mov_b32 s36, 0", w=['s36'])
    XF = 128
    WF = 192
    QACC = 64
    def issueA(t):
        for i in range(4):
            e.salu(f"s_add_u32 m0, s35, {(t%4)*REG + i*4096}", w=['m0'], r=['s35'])
            e.dma(vWQO, 20, 36, ('A', t))
            e.salu(f"s_add_u32 s36, s36, {16*8192}", w=['s36'])
        for u in range(4):
            e.bload(XF + (t % 4) * 16 + u * 4, 4, vXO, 8, None, 128 * t + 32 * u, ('A', t))
    for t in range(3):
        issueA(t)
    wfi = [0]
    for t in range(9):
        e.wait_vm(('A', t))
        e.barrier()
        if t + 3 < 9:
            issueA(t + 3)
        items = [(u, T) for u in range(4) for T in range(4)]
        def rd(k):
            u, T = items[k]
            slot = k % 12
            for part in range(2):
                e.ds_read("ds_read_b64_tr_b16", WF + slot * 4 + part * 2, 2, VA + T,
                          (t % 4) * REG + (16 * u + 4 * part) * 256, ('wf', t, k))
        PRE = 6
        for k in range(min(PRE, 16)):
            rd(k)
        for k in range(16):
            u, T = items[k]
            if k + PRE < 16:
                rd(k + PRE)
            e.wait_lgkm(('wf', t, k))
            e.mfma('32', QACC + T * 16, WF + (k % 12) * 4, XF + (t % 4) * 16 + u * 4,
                   cin=(0 if (t == 0 and u == 0) else None))
    for T in range(4):
        for ip in range(2):
            for jj in range(4):
                a = QACC + T * 16 + 8 * ip + 2 * jj
                d = QF + (2 * T + ip) * 4 + jj
                e.valu(f"v_cvt_pk_bf16_f32 v{d}, v{a}, v{a+1}", w=[f'v{d}'], r=[f'v{a}', f'v{a+1}'])
    e.barrier()
    def setK(j):
        e.valu(f"v_add_u32 v{KA}, {Kreg(j)}, v{vKA0}", w=[f'v{KA}'], r=[f'v{vKA0}'])
        for s in range(1, 8):
            e.valu(f"v_xor_b32 v{KA+s}, {s<<5}, v{KA}", w=[f'v{KA+s}'], r=[f'v{KA}'])
    def setV(j):
        e.valu(f"v_add_u32 v{VA}, {Vreg(j)}, v{vVA0}", w=[f'v{VA}'], r=[f'v{vVA0}'])
        for dt in range(1, 4):
            e.valu(f"v_xor_b32 v{VA+dt}, {dt<<6}, v{VA}", w=[f'v{VA+dt}'], r=[f'v{VA}'])
    def qk_steps(j):
        sb = SB + (j & 1) * 32
        st = []
        for kt in range(2):
            for s in range(8):
                k = kt * 8 + s
                def rd(k=k, kt=kt, s=s):
                    e.ds_read("ds_read_b128", KF + (k % 4) * 4, 4, KA + s, kt * 8192, ('kf', j, k))
                def mf(k=k, kt=kt, s=s):
                    e.wait_lgkm(('kf', j, k))
                    e.mfma('32', sb + kt * 16, KF + (k % 4) * 4, QF + s * 4, cin=(0 if s == 0 else None))
                st.append((rd, mf))
        return st
    def pv_steps(j):
        st = []
        for ks in range(4):
            for dt in range(4):
                k = ks * 4 + dt
                def rd(k=k, ks=ks, dt=dt):
                    for part in range(2):
                        e.ds_read("ds_read_b64_tr_b16", VF + (k % 4) * 4 + part * 2, 2, VA + dt,
                                  (16 * ks + 8 * part) * 256, ('vf', j, k))
                def mf(k=k, ks=ks, dt=dt):
                    e.wait_lgkm(('vf', j, k))
                    e.mfma('32', OA + dt * 16, VF + (k % 4) * 4, PB + ks * 4,
                           cin=(0 if (j == 0 and ks == 0) else None))
                st.append((rd, mf))
        return st
    def sm_ops(j):
        sb = SB + (j & 1) * 32
        ops = []
        def val(t, w, r): ops.append(lambda: e.valu(t, w=w, r=r))
        def tr(t, w, r): ops.append(lambda: e.trans(t, w=w, r=r))
        R = lambda x: f'v{x}'
        for half, tt in ((0, vT0), (1, vT1)):
            b = sb + 16 * half
            val(f"v_max3_f32 v{tt}, v{b}, v{b+1}, v{b+2}", [R(tt)], [R(b), R(b+1), R(b+2)])
            for k in range(3, 15, 2):
                val(f"v_max3_f32 v{tt}, v{tt}, v{b+k}, v{b+k+1}", [R(tt)], [R(tt), R(b+k), R(b+k+1)])
            val(f"v_max_f32 v{tt}, v{tt}, v{b+15}", [R(tt)], [R(tt), R(b+15)])
        val(f"v_max_f32 v{vT0}, v{vT0}, v{vT1}", [R(vT0)], [R(vT0), R(vT1)])
        val(f"v_mov_b32 v{vT1}, v{vT0}", [R(vT1)], [R(vT0)])
        ops.append(lambda: e.ins(f"v_permlane32_swap_b32 v{vT0}, v{vT1}", 'perm', w=[R(vT0), R(vT1)], r=[R(vT0), R(vT1)]))
        if j == 0:
            val(f"v_max_f32 v{vM}, v{vT0}, v{vT1}", [R(vM)], [R(vT0), R(vT1)])
            val(f"v_mul_f32 v{vMC}, s34, v{vM}", [R(vMC)], [R(vM), 's34'])
        else:
            val(f"v_max3_f32 v{vT0}, v{vT0}, v{vT1}, v{vM}", [R(vT0)], [R(vT0), R(vT1), R(vM)])
            val(f"v_sub_f32 v{vT1}, v{vM}, v{vT0}", [R(vT1)], [R(vM), R(vT0)])
            val(f"v_mul_f32 v{vT1}, s34, v{vT1}", [R(vT1)], [R(vT1), 's34'])
            tr(f"v_exp_f32 v{vAL}, v{vT1}", [R(vAL)], [R(vT1)])
            val(f"v_mov_b32 v{vM}, v{vT0}", [R(vM)], [R(vT0)])
            val(f"v_mul_f32 v{vMC}, s34, v{vT0}", [R(vMC)], [R(vT0), 's34'])
        def expk(ks):
            b = sb + (ks >> 1) * 16 + (ks & 1) * 8
            for jj in range(8):
                val(f"v_fma_f32 v{b+jj}, v{b+jj}, s34, -v{vMC}", [R(b+jj)], [R(b+jj), 's34', R(vMC)])
                tr(f"v_exp_f32 v{b+jj}, v{b+jj}", [R(b+jj)], [R(b+jj)])
            for jj in range(0, 8, 2):
                d = PB + ks * 4 + jj // 2
                val(f"v_cvt_pk_bf16_f32 v{d}, v{b+jj}, v{b+jj+1}", [R(d)], [R(b+jj), R(b+jj+1)])
                if j == 0 and ks == 0 and jj == 0:
                    val(f"v_mov_b32 v{vL}, v{b}", [R(vL)], [R(b)])
                    val(f"v_mov_b32 v{vL2}, v{b+1}", [R(vL2)], [R(b+1)])
                else:
                    val(f"v_add_f32 v{vL}, v{vL}, v{b+jj}", [R(vL)], [R(vL), R(b+jj)])
                    val(f"v_add_f32 v{vL2}, v{vL2}, v{b+jj+1}", [R(vL2)], [R(vL2), R(b+jj+1)])
        if j > 0:
            val(f"v_mul_f32 v{vL}, v{vL}, v{vAL}", [R(vL)], [R(vL), R(vAL)])
            val(f"v_mul_f32 v{vL2}, v{vL2}, v{vAL}", [R(vL2)], [R(vL2), R(vAL)])
        expk(0)
        if j > 0:
            for k in range(64):
                val(f"v_mul_f32 v{OA+k}, v{OA+k}, v{vAL}", [R(OA+k)], [R(OA+k), R(vAL)])
        expk(1)
        A = ops; ops = []
        expk(2)
        B2 = ops; ops = []
        expk(3)
        B3 = ops
        return A, B2, B3
    def run_mf(steps, ops, pre=3):
        n = len(steps)
        for k in range(min(pre, n)):
            steps[k][0]()
        done = 0
        for k in range(n):
            tgt = (len(ops) * (k + 1) + n - 1) // n if k < n else len(ops)
            tgt0 = (len(ops) * k + n - 1) // n
            while done < tgt0:
                ops[done](); done += 1
            if k + pre < n:
                steps[k + pre][0]()
            steps[k][1]()
        while done < len(ops):
            ops[done](); done += 1
    setK(0)
    run_mf(qk_steps(0), [])
    for j in range(8):
        e.barrier()
        if j < 7:
            setK(j + 1)
        setV(j)
        A, B2, B3 = sm_ops(j)
        if j < 7:
            run_mf(qk_steps(j + 1), A)
        else:
            for o in A: o()
        pvs = pv_steps(j)
        n = 16; pre = 3
        for k in range(pre):
            pvs[k][0]()
        d2 = d3 = 0
        for k in range(n):
            if k < 8:
                ops = B2 + B3
                tgt = (len(ops) * (k + 1)) // 8
                while d2 < tgt:
                    ops[d2](); d2 += 1
            if k + pre < n:
                pvs[k + pre][0]()
            pvs[k][1]()
    e.barrier()
    e.valu(f"v_add_f32 v{vL}, v{vL}, v{vL2}", w=[f'v{vL}'], r=[f'v{vL}', f'v{vL2}'])
    e.valu(f"v_mov_b32 v{vT0}, v{vL}", w=[f'v{vT0}'], r=[f'v{vL}'])
    e.ins(f"v_permlane32_swap_b32 v{vT0}, v{vL}", 'perm', w=[f'v{vT0}', f'v{vL}'], r=[f'v{vT0}', f'v{vL}'])
    e.valu(f"v_add_f32 v{vL}, v{vL}, v{vT0}", w=[f'v{vL}'], r=[f'v{vL}', f'v{vT0}'])
    e.trans(f"v_rcp_f32 v{vAL}, v{vL}", w=[f'v{vAL}'], r=[f'v{vL}'])
    e.valu("v_bfe_u32 v2, v1, 4, 1", w=['v2'], r=['v1'])
    e.valu("v_lshlrev_b32 v2, 13, v2", w=['v2'], r=['v2'])
    e.valu("v_lshrrev_b32 v3, 5, v1", w=['v3'], r=['v1'])
    e.valu("v_lshlrev_b32 v3, 4, v3", w=['v3'], r=['v3'])
    e.valu("v_and_b32 v4, 15, v1", w=['v4'], r=['v1'])
    e.valu("v_add3_u32 v2, v2, v3, v4", w=['v2'], r=['v2', 'v3', 'v4'])
    e.valu("v_lshlrev_b32 v2, 4, v2", w=['v2'], r=['v2'])
    e.salu("s_mul_i32 s33, s31, 9"); e.salu("s_lshl_b32 s35, s32, 1"); e.salu("s_add_u32 s33, s33, s35")
    e.salu("s_lshl_b32 s33, s33, 7"); e.salu("s_lshl_b32 s35, s30, 2"); e.salu("s_add_u32 s33, s33, s35")
    e.salu("s_lshl_b32 s33, s33, 10", w=['s33'])
    for dt in range(4):
        for ip in range(2):
            b = OA + dt * 16 + ip * 8
            d = SB + (dt * 2 + ip) * 4
            for jj in range(8):
                e.valu(f"v_mul_f32 v{b+jj}, v{b+jj}, v{vAL}", w=[f'v{b+jj}'], r=[f'v{b+jj}', f'v{vAL}'])
            for jj in range(4):
                e.valu(f"v_cvt_pk_bf16_f32 v{d+jj}, v{b+2*jj}, v{b+2*jj+1}", w=[f'v{d+jj}'], r=[f'v{b+2*jj}', f'v{b+2*jj+1}'])
            e.bstore(d, 4, 2, 24, 33, dt * 1024 + ip * 512)
    e.raw("    s_endpgm")

def gen_aux(e):
    XF = 128
    RB = 64
    Q8 = 32
    QA8 = 48
    S8 = 48; P8 = 56
    O8 = 200
    KF8 = 232
    VF8 = 128
    aKO, aVO, aXO, aWQ, aKA, aVA, aWR = 10, 11, 12, 13, 14, 18, 22
    vM, vL, vMC, vAL, vT0, vT1, aKA0, aVA0 = 23, 24, 25, 26, 27, 28, 29, 30
    e.salu("s_sub_u32 s32, s32, 4", w=['s32'])
    e.valu("v_lshrrev_b32 v2, 4, v1", w=['v2'], r=['v1'])
    e.valu("v_and_b32 v3, 15, v1", w=['v3'], r=['v1'])
    e.valu("v_bfe_u32 v4, v1, 2, 2", w=['v4'], r=['v1'])
    e.valu("v_and_b32 v5, 3, v1", w=['v5'], r=['v1'])
    e.valu("v_add_u32 v6, 128, v3", w=['v6'], r=['v3'])
    e.valu("v_mul_u32_u24 v6, 1152, v6", w=['v6'], r=['v6'])
    e.valu("v_lshlrev_b32 v7, 4, v2", w=['v7'], r=['v2'])
    e.valu(f"v_add_u32 v{aXO}, v6, v7", w=[f'v{aXO}'], r=['v6', 'v7'])
    for k in range(18):
        e.bload(XF + k * 4, 4, aXO, 8, None, 64 * k, ('x', k))
    e.salu("s_lshl_b32 s33, s32, 2", w=['s33'])
    e.valu("v_add_u32 v6, s33, v2", w=['v6'], r=['v2', 's33'])
    e.valu("v_xor_b32 v7, v6, v3", w=['v7'], r=['v6', 'v3'])
    e.valu("v_lshlrev_b32 v7, 4, v7", w=['v7'], r=['v7'])
    e.valu("v_lshlrev_b32 v6, 8, v6", w=['v6'], r=['v6'])
    e.valu(f"v_add_u32 v{aKO}, v6, v7", w=[f'v{aKO}'], r=['v6', 'v7'])
    e.salu("s_and_b32 s33, s32, 1"); e.salu("s_lshl_b32 s33, s33, 1", w=['s33'])
    e.valu("v_lshlrev_b32 v7, 2, v2", w=['v7'], r=['v2'])
    e.valu("v_or_b32 v7, s33, v7", w=['v7'], r=['v7', 's33'])
    e.valu("v_xor_b32 v7, v7, v3", w=['v7'], r=['v7', 'v3'])
    e.valu("v_lshlrev_b32 v7, 4, v7", w=['v7'], r=['v7'])
    e.valu(f"v_add_u32 v{aVO}, v6, v7", w=[f'v{aVO}'], r=['v6', 'v7'])
    e.salu("s_lshl_b32 s35, s32, 10", w=['s35'])
    e.valu("v_lshlrev_b32 v6, 4, v1", w=['v6'], r=['v1'])
    e.valu(f"v_add_u32 v{aWR}, s35, v6", w=[f'v{aWR}'], r=['v6', 's35'])
    def dmaKV(kind, j):
        reg = Kreg(j) if kind == 'K' else Vreg(j)
        srd = 12 if kind == 'K' else 16
        vo = aKO if kind == 'K' else aVO
        for i in range(4):
            e.salu(f"s_mov_b32 s36, {j*16384 + i*4096}", w=['s36'])
            e.salu(f"s_add_u32 m0, s35, {reg + i*4096}", w=['m0'], r=['s35'])
            e.dma(vo, srd, 36, (kind, j))
    def ldKV(kind, j, rb):
        srd = 12 if kind == 'K' else 16
        vo = aKO if kind == 'K' else aVO
        for i in range(4):
            e.salu(f"s_mov_b32 s36, {j*16384 + i*4096}", w=['s36'])
            e.bload(rb + i * 4, 4, vo, srd, 36, 0, (kind, j))
    def wrKV(kind, j, rb):
        reg = Kreg(j) if kind == 'K' else Vreg(j)
        e.wait_vm((kind, j))
        e.valu(f"v_add_u32 v2, {reg}, v{aWR}", w=['v2'], r=[f'v{aWR}'])
        for i in range(4):
            e.ds_write("ds_write_b128", 2, rb + i * 4, 4, i * 4096)
    for kind, j in (('K', 0), ('K', 1), ('V', 0), ('K', 2), ('V', 1), ('V', 2)):
        dmaKV(kind, j)
    ldKV('K', 3, RB); ldKV('V', 3, RB + 16); ldKV('K', 4, RB + 32); ldKV('V', 4, RB + 48)
    e.salu("s_lshl_b32 s33, s32, 2", w=['s33'])
    e.valu("v_add_u32 v6, s33, v5", w=['v6'], r=['v5', 's33'])
    e.valu("v_lshlrev_b32 v7, 2, v4", w=['v7'], r=['v4'])
    e.valu("v_xor_b32 v6, v6, v7", w=['v6'], r=['v6', 'v7'])
    e.valu("v_lshlrev_b32 v6, 4, v6", w=['v6'], r=['v6'])
    e.valu("v_lshlrev_b32 v7, 3, v2", w=['v7'], r=['v2'])
    e.valu("v_add_u32 v7, v7, v4", w=['v7'], r=['v7', 'v4'])
    e.valu("v_lshlrev_b32 v7, 8, v7", w=['v7'], r=['v7'])
    e.valu("v_add_u32 v6, v6, v7", w=['v6'], r=['v6', 'v7'])
    e.valu(f"v_add_u32 v{aWQ}, {WQ0}, v6", w=[f'v{aWQ}'], r=['v6'])
    e.salu("s_lshl_b32 s33, s32, 4", w=['s33'])
    e.valu("v_add_u32 v6, s33, v3", w=['v6'], r=['v3', 's33'])
    e.valu("v_lshlrev_b32 v6, 8, v6", w=['v6'], r=['v6'])
    e.valu("v_xor_b32 v7, v2, v3", w=['v7'], r=['v2', 'v3'])
    e.valu("v_lshlrev_b32 v7, 4, v7", w=['v7'], r=['v7'])
    e.valu(f"v_add_u32 v{aKA0}, v6, v7", w=[f'v{aKA0}'], r=['v6', 'v7'])
    e.valu("v_lshlrev_b32 v6, 2, v2", w=['v6'], r=['v2'])
    e.valu("v_add3_u32 v6, v6, v4, s33", w=['v6'], r=['v6', 'v4', 's33'])
    e.valu("v_lshlrev_b32 v6, 8, v6", w=['v6'], r=['v6'])
    e.valu("v_lshlrev_b32 v7, 2, v4", w=['v7'], r=['v4'])
    e.valu("v_xor_b32 v7, v7, v5", w=['v7'], r=['v7', 'v5'])
    e.valu("v_and_b32 v8, 1, v2", w=['v8'], r=['v2'])
    e.valu("v_lshlrev_b32 v8, 1, v8", w=['v8'], r=['v8'])
    e.valu("v_xor_b32 v7, v7, v8", w=['v7'], r=['v7', 'v8'])
    e.valu("v_lshlrev_b32 v7, 4, v7", w=['v7'], r=['v7'])
    e.valu(f"v_add_u32 v{aVA0}, v6, v7", w=[f'v{aVA0}'], r=['v6', 'v7'])
    WF8 = 232
    for t in range(9):
        e.barrier()
        for u2 in range(2):
            for tt in range(2):
                for part in range(2):
                    e.ds_read("ds_read_b64_tr_b16", WF8 + (u2 * 2 + tt) * 4 + part * 2, 2, aWQ,
                              (t % 4) * REG + (32 * u2 + 4 * part) * 256 + 8 * tt, ('wf', t, u2, tt))
        for u2 in range(2):
            e.wait_vm(('x', 2 * t + u2))
            for tt in range(2):
                e.wait_lgkm(('wf', t, u2, tt))
                e.mfma('16', QA8 + tt * 4, WF8 + (u2 * 2 + tt) * 4, XF + (2 * t + u2) * 4,
                       cin=(0 if (t == 0 and u2 == 0) else None))
    for jj in range(4):
        a = QA8 + 2 * jj
        e.valu(f"v_cvt_pk_bf16_f32 v{Q8+jj}, v{a}, v{a+1}", w=[f'v{Q8+jj}'], r=[f'v{a}', f'v{a+1}'])
    e.valu(f"v_add_u32 v2, {9*REG}, v{aWR}", w=['v2'], r=[f'v{aWR}'])
    e.ds_write("ds_write_b128", 2, Q8, 4, 0)
    e.wait_vm(('K', 0))
    e.wait_lgkm()
    e.barrier()
    e.valu("v_lshlrev_b32 v2, 4, v1", w=['v2'], r=['v1'])
    e.valu(f"v_add_u32 v2, {9*REG}, v2", w=['v2'], r=['v2'])
    for s in range(4):
        e.ds_read("ds_read_b128", Q8 + s * 4, 4, 2, s * 1024, 'q8')
    e.wait_lgkm()
    R = lambda x: f'v{x}'
    def qk8(j):
        e.valu(f"v_add_u32 v{aKA}, {Kreg(j)}, v{aKA0}", w=[R(aKA)], r=[R(aKA0)])
        for s in range(1, 4):
            e.valu(f"v_xor_b32 v{aKA+s}, {s<<6}, v{aKA}", w=[R(aKA+s)], r=[R(aKA)])
        for s in range(4):
            e.ds_read("ds_read_b128", KF8 + s * 4, 4, aKA + s, 0, ('k8', j, s))
        for s in range(4):
            e.wait_lgkm(('k8', j, s))
            e.mfma('16', S8, KF8 + s * 4, Q8 + s * 4, cin=(0 if s == 0 else None))
    def sm8(j):
        e.valu(f"v_max3_f32 v{vT0}, v{S8}, v{S8+1}, v{S8+2}", w=[R(vT0)], r=vs(S8, 3))
        e.valu(f"v_max_f32 v{vT0}, v{vT0}, v{S8+3}", w=[R(vT0)], r=[R(vT0), R(S8+3)])
        e.valu(f"v_mov_b32 v{vT1}, v{vT0}", w=[R(vT1)], r=[R(vT0)])
        e.ins(f"v_permlane16_swap_b32 v{vT0}, v{vT1}", 'perm', w=[R(vT0), R(vT1)], r=[R(vT0), R(vT1)])
        e.valu(f"v_max_f32 v{vT0}, v{vT0}, v{vT1}", w=[R(vT0)], r=[R(vT0), R(vT1)])
        e.valu(f"v_mov_b32 v{vT1}, v{vT0}", w=[R(vT1)], r=[R(vT0)])
        e.ins(f"v_permlane32_swap_b32 v{vT0}, v{vT1}", 'perm', w=[R(vT0), R(vT1)], r=[R(vT0), R(vT1)])
        if j == 0:
            e.valu(f"v_max_f32 v{vM}, v{vT0}, v{vT1}", w=[R(vM)], r=[R(vT0), R(vT1)])
            e.valu(f"v_mul_f32 v{vMC}, s34, v{vM}", w=[R(vMC)], r=[R(vM), 's34'])
        else:
            e.valu(f"v_max3_f32 v{vT0}, v{vT0}, v{vT1}, v{vM}", w=[R(vT0)], r=[R(vT0), R(vT1), R(vM)])
            e.valu(f"v_sub_f32 v{vT1}, v{vM}, v{vT0}", w=[R(vT1)], r=[R(vM), R(vT0)])
            e.valu(f"v_mul_f32 v{vT1}, s34, v{vT1}", w=[R(vT1)], r=[R(vT1), 's34'])
            e.trans(f"v_exp_f32 v{vAL}, v{vT1}", w=[R(vAL)], r=[R(vT1)])
            e.valu(f"v_mov_b32 v{vM}, v{vT0}", w=[R(vM)], r=[R(vT0)])
            e.valu(f"v_mul_f32 v{vMC}, s34, v{vT0}", w=[R(vMC)], r=[R(vT0), 's34'])
            e.valu(f"v_mul_f32 v{vL}, v{vL}, v{vAL}", w=[R(vL)], r=[R(vL), R(vAL)])
            for k in range(32):
                e.valu(f"v_mul_f32 v{O8+k}, v{O8+k}, v{vAL}", w=[R(O8+k)], r=[R(O8+k), R(vAL)])
        for k in range(4):
            e.valu(f"v_fma_f32 v{S8+k}, v{S8+k}, s34, -v{vMC}", w=[R(S8+k)], r=[R(S8+k), 's34', R(vMC)])
            e.trans(f"v_exp_f32 v{S8+k}, v{S8+k}", w=[R(S8+k)], r=[R(S8+k)])
        for k in range(4):
            if j == 0 and k == 0:
                e.valu(f"v_mov_b32 v{vL}, v{S8}", w=[R(vL)], r=[R(S8)])
            else:
                e.valu(f"v_add_f32 v{vL}, v{vL}, v{S8+k}", w=[R(vL)], r=[R(vL), R(S8+k)])
        e.valu(f"v_cvt_pk_bf16_f32 v{P8}, v{S8}, v{S8+1}", w=[R(P8)], r=[R(S8), R(S8+1)])
        e.valu(f"v_cvt_pk_bf16_f32 v{P8+1}, v{S8+2}, v{S8+3}", w=[R(P8+1)], r=[R(S8+2), R(S8+3)])
    def pv8(j):
        e.valu(f"v_add_u32 v{aVA}, {Vreg(j)}, v{aVA0}", w=[R(aVA)], r=[R(aVA0)])
        for u in range(1, 4):
            e.valu(f"v_xor_b32 v{aVA+u}, {u<<6}, v{aVA}", w=[R(aVA+u)], r=[R(aVA)])
        for u in range(4):
            for tt in range(2):
                e.ds_read("ds_read_b64_tr_b16", VF8 + (u * 2 + tt) * 2, 2, aVA + u, 8 * tt, ('v8', j, u, tt))
        for u in range(4):
            for tt in range(2):
                e.wait_lgkm(('v8', j, u, tt))
                e.mfma('16h', O8 + (u * 2 + tt) * 4, VF8 + (u * 2 + tt) * 2, P8, cin=(0 if j == 0 else None))
    qk8(0); sm8(0)
    need = {0: [('K', 1), ('V', 0)], 1: [('K', 2), ('V', 1)], 2: [('V', 2)], 3: [], 4: [('K', 5)],
            5: [('K', 6), ('V', 5)], 6: [('K', 7), ('V', 6)], 7: [('V', 7)]}
    for j in range(8):
        for tg in need[j]:
            e.wait_vm(tg)
        e.wait_lgkm()
        e.barrier()
        if j == 0: dmaKV('K', 5)
        if j == 1: dmaKV('K', 6); dmaKV('V', 5)
        if j == 2: dmaKV('K', 7); dmaKV('V', 6)
        if j == 3: dmaKV('V', 7)
        pv8(j)
        if j < 7:
            qk8(j + 1); sm8(j + 1)
        if j == 0: wrKV('K', 3, RB)
        if j == 1: wrKV('V', 3, RB + 16); wrKV('K', 4, RB + 32)
        if j == 2: wrKV('V', 4, RB + 48)
    e.valu(f"v_mov_b32 v{vT1}, v{vL}", w=[R(vT1)], r=[R(vL)])
    e.ins(f"v_permlane16_swap_b32 v{vL}, v{vT1}", 'perm', w=[R(vL), R(vT1)], r=[R(vL), R(vT1)])
    e.valu(f"v_add_f32 v{vL}, v{vL}, v{vT1}", w=[R(vL)], r=[R(vL), R(vT1)])
    e.valu(f"v_mov_b32 v{vT1}, v{vL}", w=[R(vT1)], r=[R(vL)])
    e.ins(f"v_permlane32_swap_b32 v{vL}, v{vT1}", 'perm', w=[R(vL), R(vT1)], r=[R(vL), R(vT1)])
    e.valu(f"v_add_f32 v{vL}, v{vL}, v{vT1}", w=[R(vL)], r=[R(vL), R(vT1)])
    e.salu("s_lshl_b32 s33, s32, 13", w=['s33'])
    e.valu("v_lshlrev_b32 v2, 4, v1", w=['v2'], r=['v1'])
    e.valu(f"v_add_u32 v2, {6*REG}, v2", w=['v2'], r=['v2'])
    e.valu("v_add_u32 v3, s33, v2", w=['v3'], r=['v2', 's33'])
    for T in range(8):
        e.ds_write("ds_write_b128", 3, O8 + T * 4, 4, T * 1024)
    e.valu(f"v_mov_b32 v{vT0}, v{vM}", w=[R(vT0)], r=[R(vM)])
    e.valu(f"v_mov_b32 v{vT1}, v{vL}", w=[R(vT1)], r=[R(vL)])
    e.valu("v_lshlrev_b32 v4, 3, v1", w=['v4'], r=['v1'])
    e.valu(f"v_add_u32 v4, {8*REG}, v4", w=['v4'], r=['v4'])
    e.salu("s_lshl_b32 s33, s32, 9", w=['s33'])
    e.valu("v_add_u32 v5, s33, v4", w=['v5'], r=['v4', 's33'])
    assert vT1 == vT0 + 1 and vT0 % 2 == 1
    e.valu(f"v_mov_b32 v6, v{vM}", w=['v6'], r=[R(vM)])
    e.valu(f"v_mov_b32 v7, v{vL}", w=['v7'], r=[R(vL)])
    e.ds_write("ds_write_b64", 5, 6, 2, 0)
    e.wait_lgkm()
    e.barrier()
    ML = 64
    OP = 72
    for a2 in range(4):
        e.ds_read("ds_read_b64", ML + a2 * 2, 2, 4, a2 * 512, 'ml')
    e.salu("s_lshl_b32 s33, s32, 11", w=['s33'])
    e.valu("v_add_u32 v3, s33, v2", w=['v3'], r=['v2', 's33'])
    for a2 in range(4):
        for tt in range(2):
            e.ds_read("ds_read_b128", OP + (a2 * 2 + tt) * 4, 4, 3, a2 * 8192 + tt * 1024, 'op')
    e.wait_lgkm('ml')
    e.valu(f"v_max3_f32 v{vM}, v{ML}, v{ML+2}, v{ML+4}", w=[R(vM)], r=[R(ML), R(ML+2), R(ML+4)])
    e.valu(f"v_max_f32 v{vM}, v{vM}, v{ML+6}", w=[R(vM)], r=[R(vM), R(ML+6)])
    for a2 in range(4):
        e.valu(f"v_sub_f32 v{ML+2*a2}, v{ML+2*a2}, v{vM}", w=[R(ML+2*a2)], r=[R(ML+2*a2), R(vM)])
        e.valu(f"v_mul_f32 v{ML+2*a2}, s34, v{ML+2*a2}", w=[R(ML+2*a2)], r=[R(ML+2*a2), 's34'])
        e.trans(f"v_exp_f32 v{ML+2*a2}, v{ML+2*a2}", w=[R(ML+2*a2)], r=[R(ML+2*a2)])
    e.valu(f"v_mul_f32 v{vL}, v{ML}, v{ML+1}", w=[R(vL)], r=[R(ML), R(ML+1)])
    for a2 in range(1, 4):
        e.valu(f"v_fma_f32 v{vL}, v{ML+2*a2}, v{ML+2*a2+1}, v{vL}", w=[R(vL)], r=[R(ML+2*a2), R(ML+2*a2+1), R(vL)])
    e.trans(f"v_rcp_f32 v{vAL}, v{vL}", w=[R(vAL)], r=[R(vL)])
    for a2 in range(4):
        e.valu(f"v_mul_f32 v{ML+2*a2}, v{ML+2*a2}, v{vAL}", w=[R(ML+2*a2)], r=[R(ML+2*a2), R(vAL)])
    e.wait_lgkm('op')
    for k in range(8):
        e.valu(f"v_mul_f32 v{OP+k}, v{OP+k}, v{ML}", w=[R(OP+k)], r=[R(OP+k), R(ML)])
        for a2 in range(1, 4):
            e.valu(f"v_fma_f32 v{OP+k}, v{OP+a2*8+k}, v{ML+2*a2}, v{OP+k}", w=[R(OP+k)], r=[R(OP+a2*8+k), R(ML+2*a2), R(OP+k)])
    for jj in range(4):
        e.valu(f"v_cvt_pk_bf16_f32 v{Q8+jj}, v{OP+2*jj}, v{OP+2*jj+1}", w=[R(Q8+jj)], r=[R(OP+2*jj), R(OP+2*jj+1)])
    e.salu("s_mul_i32 s33, s31, 9"); e.salu("s_add_u32 s33, s33, 8"); e.salu("s_lshl_b32 s33, s33, 7")
    e.salu("s_lshl_b32 s35, s30, 2"); e.salu("s_add_u32 s33, s33, s35"); e.salu("s_add_u32 s33, s33, s32")
    e.salu("s_lshl_b32 s33, s33, 10", w=['s33'])
    e.valu("v_lshlrev_b32 v2, 4, v1", w=['v2'], r=['v1'])
    e.bstore(Q8, 4, 2, 24, 33, 0)

def gen_k1(name):
    e = Em()
    common_prologue(e, name)
    gen_main(e)
    e2 = Em()
    e2.raw(f"{name}_aux:")
    e2.nop(8)
    gen_aux(e2)
    e2.raw(f"{name}_done:")
    e2.raw("    s_endpgm")
    return e.text() + e2.text(), 248
```

```python
from em import *

K2_D = 8
def gen_k2(name):
    e = Em()
    e.raw(f".globl {name}\n.p2align 8\n.type {name},@function\n{name}:")
    e.salu("s_cmp_ge_u32 s2, 216", r=['s2'])
    e.salu(f"s_cbranch_scc1 {name}_done")
    e.salu("s_load_dwordx2 s[4:5], s[0:1], 32", w=ss(4,2))
    e.salu("s_load_dwordx2 s[6:7], s[0:1], 40", w=ss(6,2))
    e.salu("s_load_dwordx2 s[20:21], s[0:1], 56", w=ss(20,2))
    e.salu("s_and_b32 s22, s2, 7", w=['s22'])
    e.salu("s_lshr_b32 s23, s2, 3", w=['s23'])
    e.salu("s_mul_i32 s24, s23, 0x5556", w=['s24'])
    e.salu("s_lshr_b32 s24, s24, 16", w=['s24'])
    e.salu("s_mul_i32 s25, s24, 3", w=['s25'])
    e.salu("s_sub_u32 s25, s23, s25", w=['s25'])
    e.valu("v_and_b32 v1, 63, v0", w=['v1'], r=['v0'])
    e.valu("v_lshrrev_b32 v2, 6, v0", w=['v2'], r=['v0'])
    e.ins("v_readfirstlane_b32 s26, v2", 'rfl', w=['s26'], r=['v2'])
    e.ins("s_waitcnt lgkmcnt(0)", 'wait')
    e.salu("s_mov_b32 s8, s4"); e.salu("s_and_b32 s9, s5, 0xffff")
    e.salu(f"s_mov_b32 s10, {4096*1152}"); e.salu("s_mov_b32 s11, 0x00020000")
    e.salu("s_mov_b32 s12, s20"); e.salu("s_and_b32 s13, s21, 0xffff")
    e.salu(f"s_mov_b32 s14, {72*128*1024}"); e.salu("s_mov_b32 s15, 0x00020000")
    e.salu("s_mov_b32 s16, s6"); e.salu("s_and_b32 s17, s7, 0xffff")
    e.salu(f"s_mov_b32 s18, {1152*1152}"); e.salu("s_mov_b32 s19, 0x00020000")
    e.salu("s_mul_i32 s27, s22, 9"); e.salu("s_mul_i32 s28, s25, 3"); e.salu("s_add_u32 s27, s27, s28")
    e.salu("s_lshl_b32 s27, s27, 7")
    e.salu("s_lshl_b32 s28, s26, 5", r=['s26'])
    e.salu("s_add_u32 s27, s27, s28")
    e.salu("s_lshl_b32 s27, s27, 10")
    e.salu(f"s_mul_i32 s28, s26, {1024*1152}", r=['s26'])
    e.salu("s_lshl_b32 s29, s24, 7")
    e.salu("s_add_u32 s28, s28, s29")
    e.salu("s_lshl_b32 s29, s26, 15", r=['s26'])
    e.valu("v_lshlrev_b32 v4, 4, v1", w=['v4'], r=['v1'])
    e.valu("v_add_u32 v5, 0x20000, v4", w=['v5'], r=['v4'])
    e.valu("v_add_u32 v6, 0x40000, v4", w=['v6'], r=['v4'])
    e.valu("v_lshrrev_b32 v2, 3, v1", w=['v2'], r=['v1'])
    e.valu("v_mul_u32_u24 v2, 1152, v2", w=['v2'], r=['v2'])
    e.valu("v_bfe_u32 v3, v1, 4, 1", w=['v3'], r=['v1'])
    e.valu("v_lshlrev_b32 v3, 1, v3", w=['v3'], r=['v3'])
    e.valu("v_and_b32 v7, 7, v1", w=['v7'], r=['v1'])
    e.valu("v_xor_b32 v3, v3, v7", w=['v3'], r=['v3', 'v7'])
    e.valu("v_lshlrev_b32 v7, 4, v3", w=['v7'], r=['v3'])
    e.valu("v_add_u32 v8, v2, v7", w=['v8'], r=['v2', 'v7'])
    e.valu("v_xor_b32 v7, 64, v7", w=['v7'], r=['v7'])
    e.valu("v_add_u32 v9, v2, v7", w=['v9'], r=['v2', 'v7'])
    e.valu(f"v_add_u32 v9, {8*1152}, v9", w=['v9'], r=['v9'])
    e.valu(f"v_add_u32 v10, {16*1152}, v8", w=['v10'], r=['v8'])
    e.valu(f"v_add_u32 v11, {16*1152}, v9", w=['v11'], r=['v9'])
    e.valu("v_lshrrev_b32 v2, 4, v1", w=['v2'], r=['v1'])
    e.valu("v_bfe_u32 v3, v1, 2, 2", w=['v3'], r=['v1'])
    e.valu("v_lshlrev_b32 v7, 3, v2", w=['v7'], r=['v2'])
    e.valu("v_add_u32 v7, v7, v3", w=['v7'], r=['v7', 'v3'])
    e.valu("v_lshlrev_b32 v7, 7, v7", w=['v7'], r=['v7'])
    e.valu("v_lshrrev_b32 v3, 1, v3", w=['v3'], r=['v3'])
    e.valu("v_and_b32 v2, 1, v2", w=['v2'], r=['v2'])
    e.valu("v_lshlrev_b32 v2, 1, v2", w=['v2'], r=['v2'])
    e.valu("v_or_b32 v2, v2, v3", w=['v2'], r=['v2', 'v3'])
    e.valu("v_lshlrev_b32 v2, 1, v2", w=['v2'], r=['v2'])
    e.valu("v_bfe_u32 v3, v1, 1, 1", w=['v3'], r=['v1'])
    e.valu("v_xor_b32 v2, v2, v3", w=['v2'], r=['v2', 'v3'])
    e.valu("v_lshlrev_b32 v2, 4, v2", w=['v2'], r=['v2'])
    e.valu("v_add_u32 v7, v7, v2", w=['v7'], r=['v7', 'v2'])
    e.valu("v_and_b32 v3, 1, v1", w=['v3'], r=['v1'])
    e.valu("v_lshlrev_b32 v3, 3, v3", w=['v3'], r=['v3'])
    e.valu("v_add_u32 v7, v7, v3", w=['v7'], r=['v7', 'v3'])
    e.valu("v_add_u32 v12, s29, v7", w=['v12'], r=['v7', 's29'])
    for ct in range(1, 4):
        e.valu(f"v_xor_b32 v{12+ct}, {ct<<5}, v12", w=[f'v{12+ct}'], r=['v12'])
    ACC = 16
    OF = 64
    AF = 64 + 12 * K2_D
    D = K2_D
    def issue(i):
        slot = i % D
        for n in range(4):
            e.salu(f"s_add_u32 m0, s29, {slot*4096 + n*1024}", w=['m0'], r=['s29'])
            e.dma(8 + n, 8, 28, ('w', i))
        for rt in range(3):
            e.bload(OF + slot * 12 + rt * 4, 4, 4 + rt, 12, 27, 0, ('o', i))
        e.salu(f"s_add_u32 s28, s28, {32*1152}", w=['s28'])
        e.salu("s_add_u32 s27, s27, 1024", w=['s27'])
    def reads(i):
        slot = i % D
        ab = AF + (i & 1) * 16
        for ct in range(4):
            for part in range(2):
                e.ds_read("ds_read_b64_tr_b16", ab + ct * 4 + part * 2, 2, 12 + ct, slot * 4096 + part * 512, ('a', i, ct))
    for i in range(D):
        issue(i)
    e.wait_vm(('o', 0))
    reads(0)
    for i in range(32):
        if i + 1 < 32:
            e.wait_vm(('o', i + 1))
            reads(i + 1)
        slot = i % D
        ab = AF + (i & 1) * 16
        for ct in range(4):
            e.wait_lgkm(('a', i, ct))
            for rt in range(3):
                e.mfma('16', ACC + (ct * 3 + rt) * 4, ab + ct * 4, OF + slot * 12 + rt * 4, cin=(0 if i == 0 else None))
        if i + D < 32:
            issue(i + D)
    e.barrier()
    e.valu("v_and_b32 v2, 15, v1", w=['v2'], r=['v1'])
    e.valu("v_mul_u32_u24 v2, 272, v2", w=['v2'], r=['v2'])
    e.valu("v_lshrrev_b32 v3, 4, v1", w=['v3'], r=['v1'])
    e.valu("v_lshlrev_b32 v3, 4, v3", w=['v3'], r=['v3'])
    e.valu("v_add_u32 v2, v2, v3", w=['v2'], r=['v2', 'v3'])
    e.salu("s_mul_i32 s30, s26, 13056", w=['s30'])
    e.valu("v_add_u32 v2, s30, v2", w=['v2'], r=['v2', 's30'])
    for ct in range(4):
        for rt in range(3):
            e.ds_write("ds_write_b128", 2, ACC + (ct * 3 + rt) * 4, 4, rt * 16 * 272 + ct * 64)
    e.wait_lgkm()
    e.barrier()
    e.valu("v_lshrrev_b32 v2, 4, v0", w=['v2'], r=['v0'])
    e.valu("v_and_b32 v3, 15, v0", w=['v3'], r=['v0'])
    e.valu("v_mul_u32_u24 v4, 272, v2", w=['v4'], r=['v2'])
    e.valu("v_lshlrev_b32 v5, 4, v3", w=['v5'], r=['v3'])
    e.valu("v_add_u32 v4, v4, v5", w=['v4'], r=['v4', 'v5'])
    R = 64
    for i in range(3):
        for w in range(4):
            e.ds_read("ds_read_b128", R + (i * 4 + w) * 4, 4, 4, i * 16 * 272 + w * 13056, ('r', i))
    e.salu("s_mul_i32 s30, s22, 144"); e.salu("s_mul_i32 s31, s25, 48"); e.salu("s_add_u32 s30, s30, s31")
    e.salu("s_mul_i32 s30, s30, 1152"); e.salu("s_lshl_b32 s31, s24, 7"); e.salu("s_add_u32 s30, s30, s31", w=['s30'])
    e.valu("v_mul_u32_u24 v5, 1152, v2", w=['v5'], r=['v2'])
    e.valu("v_lshlrev_b32 v6, 3, v3", w=['v6'], r=['v3'])
    e.valu("v_add_u32 v5, v5, v6", w=['v5'], r=['v5', 'v6'])
    for i in range(3):
        e.wait_lgkm(('r', i))
        b0 = R + i * 16
        for j in range(4):
            e.valu(f"v_add_f32 v{b0+j}, v{b0+j}, v{b0+4+j}", w=[f'v{b0+j}'], r=[f'v{b0+j}', f'v{b0+4+j}'])
            e.valu(f"v_add_f32 v{b0+8+j}, v{b0+8+j}, v{b0+12+j}", w=[f'v{b0+8+j}'], r=[f'v{b0+8+j}', f'v{b0+12+j}'])
        for j in range(4):
            e.valu(f"v_add_f32 v{b0+j}, v{b0+j}, v{b0+8+j}", w=[f'v{b0+j}'], r=[f'v{b0+j}', f'v{b0+8+j}'])
        e.valu(f"v_cvt_pk_bf16_f32 v{b0+4}, v{b0}, v{b0+1}", w=[f'v{b0+4}'], r=[f'v{b0}', f'v{b0+1}'])
        e.valu(f"v_cvt_pk_bf16_f32 v{b0+5}, v{b0+2}, v{b0+3}", w=[f'v{b0+5}'], r=[f'v{b0+2}', f'v{b0+3}'])
        if i > 0:
            e.valu(f"v_add_u32 v5, {16*1152}, v5", w=['v5'], r=['v5'])
        e.bstore(b0 + 4, 2, 5, 16, 30, 0)
    e.raw(f"{name}_done:")
    e.raw("    s_endpgm")
    nv = AF + 32
    return e.text(), nv

def desc(name, nv, ns=40):
    nv8 = (nv + 7) // 8 * 8
    return f""".amdhsa_kernel {name}
  .amdhsa_next_free_vgpr {nv8}
  .amdhsa_next_free_sgpr {ns}
  .amdhsa_accum_offset {nv8}
  .amdhsa_group_segment_fixed_size 0
  .amdhsa_kernarg_size 64
  .amdhsa_user_sgpr_count 2
  .amdhsa_user_sgpr_kernarg_segment_ptr 1
  .amdhsa_system_sgpr_workgroup_id_x 1
.end_amdhsa_kernel
"""
```

```python
from k1 import gen_k1
from k2 import gen_k2, desc
import sys
hdr = open('standalone__mha_block_cached__near_ridge.s.ref').read().split('; Override')[0]
t1, nv1 = gen_k1("attn_kernel")
t2, nv2 = gen_k2("oproj_kernel")
s = hdr
s += "; @launch kernel=attn_kernel grid=(256,1,1) block=(512,1,1) lds=163840\n"
s += "; @launch kernel=oproj_kernel grid=(216,1,1) block=(256,1,1) lds=131072\n"
s += '.amdgcn_target "amdgcn-amd-amdhsa--gfx950"\n.text\n' + t1 + t2
s += '.section .rodata,"a"\n.p2align 6\n' + desc("attn_kernel", nv1) + ".p2align 6\n" + desc("oproj_kernel", nv2)
out = sys.argv[1] if len(sys.argv) > 1 else "standalone__mha_block_cached__near_ridge.s"
open(out, "w").write(s)
print(len(s))
```

```python
import re

def V(a, n=1):
    return f"v{a}" if n == 1 else f"v[{a}:{a+n-1}]"
def S(a, n=1):
    return f"s{a}" if n == 1 else f"s[{a}:{a+n-1}]"
def vs(a, n=1):
    return [f"v{i}" for i in range(a, a + n)]
def ss(a, n=1):
    return [f"s{i}" for i in range(a, a + n)]

class Em:
    def __init__(self):
        self.lines = []
        self.hist = []
        self.lgkm = []
        self.vm = []
        self.nnop = 0
    def raw(self, t):
        self.lines.append(t)
    def comment(self, t):
        self.lines.append("    ; " + t)
    def label(self, name):
        self.nop(15)
        self.lines.append(name + ":")
        self.hist = []
    def nop(self, n):
        while n > 0:
            k = min(n, 16)
            self.lines.append(f"    s_nop {k-1}")
            self.hist.append(dict(kind='nop', w=set(), r=set(), c=set(), ws=k))
            n -= k
            self.nnop += 1
    def _need(self, p, kind, w, r, c):
        need = 0
        pk = p['kind']
        allr = r | c
        if pk in ('valu', 'trans', 'perm'):
            pw = p['w']
            pv = {x for x in pw if x[0] == 'v' and x != 'vcc'}
            psg = pw - pv
            if kind.startswith('mfma') and (pv & allr): need = max(need, 2)
            if kind == 'perm' and (pv & (r | w)): need = max(need, 2)
            if kind == 'rfl' and (pv & r): need = max(need, 1)
            if pk == 'trans' and kind in ('valu', 'perm', 'trans') and (pv & r): need = max(need, 1)
            if psg & r:
                if kind in ('valu', 'trans', 'perm'): need = max(need, 2)
                if kind in ('vmem', 'dma', 'store'): need = max(need, 5)
                if kind == 'salu': need = max(need, 2)
        if pk == 'rfl':
            if p['w'] & r:
                if kind in ('valu', 'trans', 'perm'): need = max(need, 2)
                if kind in ('vmem', 'dma', 'store'): need = max(need, 5)
                if kind == 'salu': need = max(need, 2)
        if pk.startswith('mfma'):
            P = int(pk[4:])
            big = {4: 8, 8: 12, 16: 20}[P]
            ovl = {4: 6, 8: 10, 16: 18}[P]
            war = {4: 3, 8: 7, 16: 15}[P]
            D = p['w']
            if kind.startswith('mfma'):
                if D & r: need = max(need, big)
                if D & (c | w):
                    if c == D and kind == pk: pass
                    else: need = max(need, ovl)
            else:
                if D & (r | w): need = max(need, big)
                if kind in ('valu', 'trans', 'perm') and (p['c'] & w): need = max(need, war)
        if pk == 'salu' and 'm0' in p['w'] and kind == 'dma': need = max(need, 1)
        if pk == 'store' and kind in ('valu', 'trans', 'perm', 'lds', 'vmem') and (p['r'] & w): need = max(need, 2)
        return need
    def ins(self, text, kind, w=(), r=(), c=()):
        w, r, c = set(w), set(r), set(c)
        dist = 0
        pad = 0
        for p in reversed(self.hist[-24:]):
            need = self._need(p, kind, w, r, c)
            if need > dist:
                pad = max(pad, need - dist)
            dist += p['ws']
            if dist >= 24: break
        if pad:
            self.nop(pad)
        self.lines.append("    " + text)
        self.hist.append(dict(kind=kind, w=w, r=r, c=c, ws=1))
    def salu(self, text, w=(), r=()):
        self.ins(text, 'salu', w, r)
    def valu(self, text, w=(), r=()):
        self.ins(text, 'valu', w, r)
    def trans(self, text, w=(), r=()):
        self.ins(text, 'trans', w, r)
    def mfma(self, shape, d, a, b, cin=None):
        if shape == '32':
            nm, nd, na, P = "v_mfma_f32_32x32x16_bf16", 16, 4, 8
        elif shape == '16':
            nm, nd, na, P = "v_mfma_f32_16x16x32_bf16", 4, 4, 4
        else:
            nm, nd, na, P = "v_mfma_f32_16x16x16_bf16", 4, 2, 4
        if cin is None:
            ct, cs = V(d, nd), vs(d, nd)
        elif cin == 0:
            ct, cs = "0", []
        else:
            ct, cs = V(cin, nd), vs(cin, nd)
        self.ins(f"{nm} {V(d,nd)}, {V(a,na)}, {V(b,na)}, {ct}", f"mfma{P}", vs(d, nd), vs(a, na) + vs(b, na), cs)
    def ds_read(self, op, d, n, addr, off, tag):
        self.ins(f"{op} {V(d,n)}, {V(addr)} offset:{off}", 'lds', vs(d, n), [f"v{addr}"])
        self.lgkm.append(tag)
    def ds_write(self, op, addr, s, n, off, tag='w'):
        self.ins(f"{op} {V(addr)}, {V(s,n)} offset:{off}", 'lds', [], [f"v{addr}"] + vs(s, n))
        self.lgkm.append(tag)
    def wait_lgkm(self, tag=None):
        if tag is None:
            if self.lgkm:
                self.ins("s_waitcnt lgkmcnt(0)", 'wait')
                self.lgkm = []
            return
        idx = [i for i, t in enumerate(self.lgkm) if t == tag]
        if not idx: return
        i = idx[-1]
        n = len(self.lgkm) - 1 - i
        if n > 15:
            n = 15
            i = len(self.lgkm) - 1 - 15
        self.ins(f"s_waitcnt lgkmcnt({n})", 'wait')
        self.lgkm = self.lgkm[i + 1:]
    def bload(self, d, n, voff, srd, soff, off, tag, nt=False):
        op = {1: 'buffer_load_dword', 2: 'buffer_load_dwordx2', 4: 'buffer_load_dwordx4'}[n]
        so = soff if isinstance(soff, str) else (S(soff) if soff is not None else "0")
        rs = [f"v{voff}"] + ss(srd, 4) + ([so] if so != "0" else [])
        self.ins(f"{op} {V(d,n)}, {V(voff)}, {S(srd,4)}, {so} offen offset:{off}{' nt' if nt else ''}", 'vmem', vs(d, n), rs)
        self.vm.append(tag)
    def dma(self, voff, srd, soff, tag, off=0, nt=False):
        so = S(soff) if soff is not None else "0"
        rs = [f"v{voff}", 'm0'] + ss(srd, 4) + ([so] if so != "0" else [])
        self.ins(f"buffer_load_dwordx4 {V(voff)}, {S(srd,4)}, {so} offen offset:{off}{' nt' if nt else ''} lds", 'dma', [], rs)
        self.vm.append(tag)
    def bstore(self, s, n, voff, srd, soff, off, tag='st'):
        op = {1: 'buffer_store_dword', 2: 'buffer_store_dwordx2', 4: 'buffer_store_dwordx4'}[n]
        so = S(soff) if soff is not None else "0"
        rs = [f"v{voff}"] + ss(srd, 4) + vs(s, n) + ([so] if so != "0" else [])
        self.ins(f"{op} {V(s,n)}, {V(voff)}, {S(srd,4)}, {so} offen offset:{off}", 'store', [], rs)
        self.vm.append(tag)
    def wait_vm(self, tag=None):
        if tag is None:
            if self.vm:
                self.ins("s_waitcnt vmcnt(0)", 'wait')
                self.vm = []
            return
        idx = [i for i, t in enumerate(self.vm) if t == tag]
        if not idx: return
        i = idx[-1]
        n = len(self.vm) - 1 - i
        assert n <= 63
        self.ins(f"s_waitcnt vmcnt({n})", 'wait')
        self.vm = self.vm[i + 1:]
    def barrier(self):
        self.ins("s_barrier", 'salu')
    def text(self):
        return "\n".join(self.lines) + "\n"
```

```python
from em import *
import math, struct
CSC = 128 ** -0.5 * math.log2(math.e)
def f32bits(x): return struct.unpack('<I', struct.pack('<f', x))[0]

REG = 16384
XR0 = 49152; XSZ = 18432
WQ0 = 114688; WSZ = 16384
QX0 = 131072
X80 = 114688
STGREG = {3: 32, 4: 40, 5: 48, 6: 56, 7: 112, 8: 120}
NEARLY = 3
THR = 8.0 / CSC
ITEMS = [('K', 0), ('K', 1), ('V', 0), ('K', 2), ('V', 1), ('K', 3), ('V', 2), ('K', 4), ('V', 3), ('K', 5),
         ('V', 4), ('K', 6), ('V', 5), ('K', 7), ('V', 6), ('V', 7)]
def region(kind, j): return (ITEMS.index((kind, j)) % 10) * REG
STAMP = False
STAGGER = True
STGV = False
PRIO = False
def stamp(e, idx):
    if not STAMP: return
    e.ins("s_memtime s[40:41]", 'salu', w=['s40', 's41'])
    e.ins("s_waitcnt lgkmcnt(0)", 'wait'); e.lgkm = []
    e.salu(f"s_mov_b32 s{64+idx}, s40", w=[f's{64+idx}'])
def stamp_out(e, n):
    if not STAMP: return
    e.salu("s_mov_b32 s44, s28"); e.salu("s_and_b32 s45, s29, 0xffff"); e.salu("s_mov_b32 s46, 0x8000000"); e.salu("s_mov_b32 s47, 0x00020000")
    e.salu("s_lshl_b32 s42, s2, 3"); e.salu("s_add_u32 s42, s42, s32")
    e.salu("s_lshl_b32 s42, s42, 7"); e.salu("s_add_u32 s42, s42, 0x4000000", w=['s42'])
    e.valu("v_mov_b32 v3, 0", w=['v3'])
    for i in range(n):
        e.valu(f"v_mov_b32 v4, s{64+i}", w=['v4'], r=[f's{64+i}'])
        e.bstore(4, 1, 3, 44, 42, 4 * i)
        e.ins("s_waitcnt vmcnt(0)", 'wait'); e.vm = []

R = lambda x: f'v{x}'
KA, VA = 10, 14
vM, vL, vMC, vAL, vT0, vT1 = 22, 23, 24, 25, 26, 27
vKA0, vVA0, vKO, vVO = 28, 29, 30, 31
QF, Q8, OA, O8, SB, KF, VF = 32, 48, 64, 96, 128, 160, 184
S8, P8, aM, aL, aMC, aAL, K8A, V8A = 224, 228, 230, 231, 232, 233, 234, 238
vXO, vWQO = 100, 101

def gen_k1(name):
    e = Em()
    nlab = [0]
    def newlab(tag):
        nlab[0] += 1
        return f"{name}_{tag}{nlab[0]}"
    e.raw(f".globl {name}\n.p2align 8\n.type {name},@function\n{name}:")
    e.salu("s_cmp_ge_u32 s2, 256", r=['s2'])
    e.salu(f"s_cbranch_scc1 {name}_done")
    e.salu("s_load_dwordx4 s[4:7], s[0:1], 0", w=ss(4, 4))
    e.salu("s_load_dwordx4 s[24:27], s[0:1], 16", w=ss(24, 4))
    e.salu("s_load_dwordx2 s[28:29], s[0:1], 56", w=ss(28, 2))
    e.salu("s_load_dwordx2 s[56:57], s[0:1], 32", w=ss(56, 2))
    e.salu("s_and_b32 s30, s2, 7"); e.salu("s_lshl_b32 s30, s30, 2")
    e.salu("s_lshr_b32 s31, s2, 3"); e.salu("s_and_b32 s31, s31, 3")
    e.salu("s_add_u32 s30, s30, s31")
    e.salu("s_lshr_b32 s31, s2, 5")
    e.salu("s_and_b32 s60, s31, 1")
    e.valu("v_and_b32 v1, 63, v0", w=['v1'], r=['v0'])
    e.valu("v_lshrrev_b32 v2, 6, v0", w=['v2'], r=['v0'])
    e.ins("v_readfirstlane_b32 s32, v2", 'rfl', w=['s32'], r=['v2'])
    e.valu("v_lshrrev_b32 v2, 4, v1", w=['v2'], r=['v1'])
    e.valu("v_and_b32 v3, 15, v1", w=['v3'], r=['v1'])
    e.salu("s_lshl_b32 s35, s32, 10", w=['s35'], r=['s32'])
    e.salu("s_lshl_b32 s33, s32, 2", w=['s33'])
    e.valu("v_add_u32 v4, s33, v2", w=['v4'], r=['v2', 's33'])
    e.valu("v_and_b32 v5, 15, v4", w=['v5'], r=['v4'])
    e.valu("v_xor_b32 v5, v5, v3", w=['v5'], r=['v5', 'v3'])
    e.valu("v_lshlrev_b32 v5, 4, v5", w=['v5'], r=['v5'])
    e.valu("v_lshlrev_b32 v6, 8, v4", w=['v6'], r=['v4'])
    e.valu(f"v_add_u32 v{vKO}, v6, v5", w=[R(vKO)], r=['v6', 'v5'])
    e.valu("v_and_b32 v5, 7, v4", w=['v5'], r=['v4'])
    e.valu("v_lshlrev_b32 v5, 1, v5", w=['v5'], r=['v5'])
    e.valu("v_xor_b32 v5, v5, v3", w=['v5'], r=['v5', 'v3'])
    e.valu("v_lshlrev_b32 v5, 4, v5", w=['v5'], r=['v5'])
    e.valu(f"v_add_u32 v{vVO}, v6, v5", w=[R(vVO)], r=['v6', 'v5'])
    e.valu("v_lshlrev_b32 v5, 2, v2", w=['v5'], r=['v2'])
    e.valu("v_xor_b32 v5, v5, v3", w=['v5'], r=['v5', 'v3'])
    e.valu("v_lshlrev_b32 v5, 4, v5", w=['v5'], r=['v5'])
    e.valu("v_lshlrev_b32 v6, 13, v4", w=['v6'], r=['v4'])
    e.valu(f"v_add_u32 v{vWQO}, v6, v5", w=[R(vWQO)], r=['v6', 'v5'])
    e.salu("s_and_b32 s33, s32, 1"); e.salu("s_lshl_b32 s33, s33, 2", w=['s33'])
    e.valu("v_or_b32 v5, s33, v2", w=['v5'], r=['v2', 's33'])
    e.valu("v_and_b32 v6, 7, v1", w=['v6'], r=['v1'])
    e.valu("v_xor_b32 v5, v5, v6", w=['v5'], r=['v5', 'v6'])
    e.valu("v_lshlrev_b32 v5, 4, v5", w=['v5'], r=['v5'])
    e.valu("v_lshrrev_b32 v6, 3, v1", w=['v6'], r=['v1'])
    e.salu("s_lshl_b32 s33, s32, 3", w=['s33'])
    e.valu("v_add_u32 v6, s33, v6", w=['v6'], r=['v6', 's33'])
    e.valu("v_mul_u32_u24 v6, 1152, v6", w=['v6'], r=['v6'])
    e.valu(f"v_add_u32 v{vXO}, v6, v5", w=[R(vXO)], r=['v6', 'v5'])
    e.salu("s_and_b32 s33, s32, 1"); e.salu("s_lshl_b32 s39, s33, 3"); e.salu("s_add_u32 s39, s39, 128")
    e.salu("s_lshl_b32 s43, s32, 3"); e.salu("s_sub_u32 s39, s39, s43"); e.salu("s_mul_i32 s39, s39, 1152")
    e.salu("s_add_u32 s43, s33, 16"); e.salu("s_lshl_b32 s43, s43, 10", w=['s43'])
    e.ins("s_waitcnt lgkmcnt(0)", 'wait')
    stamp(e, 0)
    e.salu("s_mul_i32 s33, s31, 165888")
    e.salu("s_add_u32 s8, s4, s33"); e.salu("s_addc_u32 s9, s5, 0"); e.salu("s_and_b32 s9, s9, 0xffff")
    e.salu("s_mov_b32 s10, 165888"); e.salu("s_mov_b32 s11, 0x00020000")
    e.salu("s_lshl_b32 s33, s31, 5"); e.salu("s_add_u32 s33, s33, s30"); e.salu("s_lshl_b32 s33, s33, 17")
    e.salu("s_add_u32 s12, s6, s33"); e.salu("s_addc_u32 s13, s7, 0"); e.salu("s_and_b32 s13, s13, 0xffff")
    e.salu("s_mov_b32 s14, 131072"); e.salu("s_mov_b32 s15, 0x00020000")
    e.salu("s_add_u32 s16, s24, s33"); e.salu("s_addc_u32 s17, s25, 0"); e.salu("s_and_b32 s17, s17, 0xffff")
    e.salu("s_mov_b32 s18, 131072"); e.salu("s_mov_b32 s19, 0x00020000")
    e.salu("s_lshl_b32 s33, s30, 8")
    e.salu("s_add_u32 s20, s26, s33"); e.salu("s_addc_u32 s21, s27, 0"); e.salu("s_and_b32 s21, s21, 0xffff")
    e.salu(f"s_sub_u32 s22, {576*8192}, s33"); e.salu("s_mov_b32 s23, 0x00020000")
    def issueA(t):
        sl = t % 3
        for i in range(2):
            e.salu(f"s_mov_b32 s36, {(64*t + 32*i)*8192}", w=['s36'])
            e.salu(f"s_add_u32 m0, s35, {WQ0 + sl*WSZ + i*8192}", w=['m0'], r=['s35'])
            e.dma(vWQO, 20, 36, ('A', t))
        for i in range(2):
            e.salu(f"s_mov_b32 s36, {64*i*1152 + 128*t}", w=['s36'])
            e.salu(f"s_add_u32 m0, s35, {XR0 + sl*XSZ + i*8192}", w=['m0'], r=['s35'])
            e.dma(vXO, 8, 36, ('A', t))
        lab = newlab("xs")
        e.salu("s_cmp_ge_u32 s32, 2"); e.salu(f"s_cbranch_scc1 {lab}")
        e.salu(f"s_add_u32 s36, s39, {128*t}", w=['s36'])
        e.salu(f"s_add_u32 m0, s43, {XR0 + sl*XSZ}", w=['m0'], r=['s43'])
        e.ins(f"buffer_load_dwordx4 v{vXO}, s[8:11], s36 offen offset:0 lds", 'dma', [], ['m0'])
        e.raw(f"{lab}:")
        e.vm.append(('Ax', t))
    def waitA(t, branchy=False):
        idx = [i for i, tg in enumerate(e.vm) if tg == ('Ax', t)][-1]
        later = [tg for tg in e.vm[idx + 1:] if tg[0] != 'Ax']
        if branchy and STAGGER:
            la, lb = newlab("wa"), newlab("wb")
            laterA = [tg for tg in later if tg[0] == 'A']
            e.salu("s_cmp_eq_u32 s60, 1"); e.salu(f"s_cbranch_scc1 {la}")
            e.ins(f"s_waitcnt vmcnt({len(later)})", 'wait')
            e.salu(f"s_branch {lb}")
            e.raw(f"{la}:")
            e.ins(f"s_waitcnt vmcnt({len(laterA)})", 'wait')
            e.raw(f"{lb}:")
        else:
            e.ins(f"s_waitcnt vmcnt({len(later)})", 'wait')
        e.vm = e.vm[idx + 1:]
    def dmaItem(i, track=True):
        kind, j = ITEMS[i]
        base = (i % 10) * REG
        srd = 12 if kind == 'K' else 16
        vo = vKO if kind == 'K' else vVO
        for k in range(2):
            e.salu(f"s_mov_b32 s36, {j*16384 + k*8192}", w=['s36'])
            e.salu(f"s_add_u32 m0, s35, {base + k*8192}", w=['m0'], r=['s35'])
            e.dma(vo, srd, 36, (kind, j), nt=True)
            if not track: e.vm.pop()
    def dma_late(items):
        if STAGGER:
            lab = newlab("dl")
            e.salu("s_cmp_eq_u32 s60, 1"); e.salu(f"s_cbranch_scc1 {lab}")
            for i in items: dmaItem(i)
            e.raw(f"{lab}:")
        else:
            for i in items: dmaItem(i)
    def by_group(f0, f1):
        la, lb = newlab("b0"), newlab("b1")
        e.salu("s_cmp_eq_u32 s60, 1"); e.salu(f"s_cbranch_scc1 {la}")
        h = list(e.hist)
        f0()
        e.salu(f"s_branch {lb}")
        e.raw(f"{la}:")
        e.hist = list(h)
        vmsave = list(e.vm); lg = list(e.lgkm)
        f1()
        e.vm = vmsave
        e.raw(f"{lb}:")
        e.hist = list(h)
    def dump(items):
        e.valu("v_lshlrev_b32 v4, 4, v1", w=['v4'], r=['v1'])
        e.valu("v_add_u32 v4, s35, v4", w=['v4'], r=['v4', 's35'])
        for i in items:
            e.valu(f"v_add_u32 v5, {(i % 10) * REG}, v4", w=['v5'], r=['v4'])
            for k in range(2):
                e.ds_write("ds_write_b128", 5, STGREG[i] + 4 * k, 4, k * 8192)
        e.wait_lgkm()
    if STAGGER:
        lab = newlab("de")
        e.salu("s_cmp_eq_u32 s60, 0"); e.salu(f"s_cbranch_scc1 {lab}")
        for i in range(NEARLY): dmaItem(i, track=False)
        for i in (sorted(STGREG) if STGV else []):
            kind, j = ITEMS[i]
            for k in range(2):
                e.salu(f"s_mov_b32 s36, {j*16384 + k*8192}", w=['s36'])
                e.bload(STGREG[i] + 4 * k, 4, vKO if kind == 'K' else vVO, 12 if kind == 'K' else 16, 36, 0, 'stg', nt=True)
                e.vm.pop()
        e.raw(f"{lab}:")
    issueA(0); issueA(1); issueA(2)
    e.salu("s_mov_b32 s24, s28"); e.salu("s_and_b32 s25, s29, 0xffff")
    e.salu(f"s_mov_b32 s26, {72*128*1024}"); e.salu("s_mov_b32 s27, 0x00020000")
    e.salu(f"s_mov_b32 s34, {f32bits(CSC):#x}")
    e.salu("s_and_b32 s37, s32, 3", r=['s32'])
    e.salu("s_lshr_b32 s38, s32, 2", r=['s32'])
    PX, PW = 102, 108
    e.valu("v_and_b32 v4, 31, v1", w=['v4'], r=['v1'])
    e.valu("v_lshrrev_b32 v5, 5, v1", w=['v5'], r=['v1'])
    e.salu("s_lshl_b32 s33, s37, 5", w=['s33'])
    e.valu("v_add_u32 v6, s33, v4", w=['v6'], r=['v4', 's33'])
    e.valu("v_bfe_u32 v7, v6, 1, 3", w=['v7'], r=['v6'])
    e.valu("v_xor_b32 v7, v7, v5", w=['v7'], r=['v7', 'v5'])
    e.valu("v_lshlrev_b32 v7, 4, v7", w=['v7'], r=['v7'])
    e.valu("v_lshlrev_b32 v6, 7, v6", w=['v6'], r=['v6'])
    e.valu("v_add_u32 v6, v6, v7", w=['v6'], r=['v6', 'v7'])
    e.valu(f"v_add_u32 v{PX}, {XR0}, v6", w=[R(PX)], r=['v6'])
    for u in range(1, 4):
        e.valu(f"v_xor_b32 v{PX+u}, {u<<5}, v{PX}", w=[R(PX+u)], r=[R(PX)])
    e.valu("v_bfe_u32 v7, v3, 1, 3", w=['v7'], r=['v3'])
    e.valu("v_xor_b32 v7, v7, v2", w=['v7'], r=['v7', 'v2'])
    e.valu("v_lshlrev_b32 v7, 4, v7", w=['v7'], r=['v7'])
    e.valu("v_lshlrev_b32 v6, 7, v3", w=['v6'], r=['v3'])
    e.valu("v_add_u32 v6, v6, v7", w=['v6'], r=['v6', 'v7'])
    e.valu(f"v_add_u32 v{PX+4}, {XR0 + 128*128}, v6", w=[R(PX+4)], r=['v6'])
    e.valu(f"v_xor_b32 v{PX+5}, 64, v{PX+4}", w=[R(PX+5)], r=[R(PX+4)])
    e.valu("v_bfe_u32 v6, v1, 4, 1", w=['v6'], r=['v1'])
    e.valu("v_lshlrev_b32 v6, 1, v6", w=['v6'], r=['v6'])
    e.valu("v_and_b32 v7, 1, v1", w=['v7'], r=['v1'])
    e.valu("v_or_b32 v6, v6, v7", w=['v6'], r=['v6', 'v7'])
    e.valu("v_bfe_u32 v7, v1, 2, 2", w=['v7'], r=['v1'])
    e.valu("v_lshlrev_b32 v8, 2, v7", w=['v8'], r=['v7'])
    e.valu("v_xor_b32 v6, v6, v8", w=['v6'], r=['v6', 'v8'])
    e.valu("v_bfe_u32 v8, v1, 1, 1", w=['v8'], r=['v1'])
    e.valu("v_lshlrev_b32 v8, 3, v8", w=['v8'], r=['v8'])
    e.valu(f"v_lshlrev_b32 v{vT0}, 3, v5", w=[R(vT0)], r=['v5'])
    e.valu(f"v_add_u32 v{vT0}, v{vT0}, v7", w=[R(vT0)], r=[R(vT0), 'v7'])
    e.valu(f"v_lshlrev_b32 v{vT0}, 8, v{vT0}", w=[R(vT0)], r=[R(vT0)])
    e.valu(f"v_lshlrev_b32 v{vT1}, 4, v6", w=[R(vT1)], r=['v6'])
    e.valu(f"v_add3_u32 v{vT0}, v{vT0}, v{vT1}, v8", w=[R(vT0)], r=[R(vT0), R(vT1), 'v8'])
    e.valu(f"v_add_u32 v{vT0}, {WQ0}, v{vT0}", w=[R(vT0)], r=[R(vT0)])
    e.salu("s_lshl_b32 s33, s38, 7", w=['s33'])
    e.valu(f"v_xor_b32 v{PW}, s33, v{vT0}", w=[R(PW)], r=[R(vT0), 's33'])
    e.valu(f"v_xor_b32 v{PW+1}, 64, v{PW}", w=[R(PW+1)], r=[R(PW)])
    e.valu("v_and_b32 v6, 3, v1", w=['v6'], r=['v1'])
    e.salu("s_lshr_b32 s33, s32, 1"); e.salu("s_lshl_b32 s33, s33, 2", w=['s33'])
    e.valu(f"v_add_u32 v{vT0}, s33, v6", w=[R(vT0)], r=['v6', 's33'])
    e.valu("v_lshlrev_b32 v8, 2, v7", w=['v8'], r=['v7'])
    e.valu(f"v_xor_b32 v{vT0}, v{vT0}, v8", w=[R(vT0)], r=[R(vT0), 'v8'])
    e.valu(f"v_lshlrev_b32 v{vT0}, 4, v{vT0}", w=[R(vT0)], r=[R(vT0)])
    e.valu(f"v_lshlrev_b32 v{vT1}, 3, v2", w=[R(vT1)], r=['v2'])
    e.valu(f"v_add_u32 v{vT1}, v{vT1}, v7", w=[R(vT1)], r=[R(vT1), 'v7'])
    e.valu(f"v_lshlrev_b32 v{vT1}, 8, v{vT1}", w=[R(vT1)], r=[R(vT1)])
    e.salu("s_and_b32 s33, s32, 1"); e.salu("s_lshl_b32 s33, s33, 3"); e.salu(f"s_add_u32 s33, s33, {WQ0}", w=['s33'])
    e.valu(f"v_add3_u32 v{PW+2}, v{vT0}, v{vT1}, s33", w=[R(PW+2)], r=[R(vT0), R(vT1), 's33'])
    e.valu(f"v_xor_b32 v{vT0}, v2, v3", w=[R(vT0)], r=['v2', 'v3'])
    e.valu(f"v_lshlrev_b32 v{vT0}, 4, v{vT0}", w=[R(vT0)], r=[R(vT0)])
    e.valu(f"v_lshlrev_b32 v{vT1}, 8, v3", w=[R(vT1)], r=['v3'])
    e.valu(f"v_add_u32 v{vKA0}, v{vT0}, v{vT1}", w=[R(vKA0)], r=[R(vT0), R(vT1)])
    e.valu(f"v_lshlrev_b32 v{vT0}, 2, v2", w=[R(vT0)], r=['v2'])
    e.valu(f"v_add_u32 v{vT0}, v{vT0}, v7", w=[R(vT0)], r=[R(vT0), 'v7'])
    e.valu(f"v_and_b32 v{vT1}, 7, v{vT0}", w=[R(vT1)], r=[R(vT0)])
    e.valu(f"v_lshlrev_b32 v{vT1}, 1, v{vT1}", w=[R(vT1)], r=[R(vT1)])
    e.valu("v_lshrrev_b32 v8, 1, v6", w=['v8'], r=['v6'])
    e.valu(f"v_xor_b32 v{vT1}, v{vT1}, v8", w=[R(vT1)], r=[R(vT1), 'v8'])
    e.valu(f"v_lshlrev_b32 v{vT1}, 4, v{vT1}", w=[R(vT1)], r=[R(vT1)])
    e.valu(f"v_lshlrev_b32 v{vT0}, 8, v{vT0}", w=[R(vT0)], r=[R(vT0)])
    e.valu("v_and_b32 v8, 1, v6", w=['v8'], r=['v6'])
    e.valu("v_lshlrev_b32 v8, 3, v8", w=['v8'], r=['v8'])
    e.valu(f"v_add3_u32 v{vVA0}, v{vT0}, v{vT1}, v8", w=[R(vVA0)], r=[R(vT0), R(vT1), 'v8'])
    QACC = 64; QA8 = 96
    def setregs(t):
        base = 128 + (t & 1) * 64
        return base, base + 16, base + 48, base + 56
    def readsA(t):
        sl = t % 3
        XF, WF, X8F, W8F = setregs(t)
        ops = []
        def rd(*a): ops.append(lambda: e.ds_read(*a))
        for u in range(4):
            rd("ds_read_b128", XF + u * 4, 4, PX + u, sl * XSZ, ('fa', t))
            for tt in range(2):
                for part in range(2):
                    rd("ds_read_b64_tr_b16", WF + (u * 2 + tt) * 4 + part * 2, 2, PW + tt,
                       sl * WSZ + (16 * u + 4 * part) * 256, ('fa', t))
        for u2 in range(2):
            rd("ds_read_b128", X8F + u2 * 4, 4, PX + 4 + u2, sl * XSZ, ('fa', t))
            for part in range(2):
                rd("ds_read_b64_tr_b16", W8F + u2 * 4 + part * 2, 2, PW + 2,
                   sl * WSZ + (32 * u2 + 4 * part) * 256, ('fa', t))
        return ops
    waitA(0)
    e.barrier()
    for o in readsA(0): o()
    for t in range(9):
        e.wait_lgkm()
        if t + 1 < 9:
            waitA(t + 1, branchy=(t + 1 >= 7))
        e.barrier()
        stamp(e, 1 + t)
        if t + 3 < 9:
            issueA(t + 3)
        if t == 5: dma_late([0, 1, 2])
        if t == 8:
            if STGV and STAGGER: by_group(lambda: (dmaItem(3), dmaItem(4)), lambda: dump([3, 4, 5, 6]))
            else: dmaItem(3); dmaItem(4)
        ops = readsA(t + 1) if t + 1 < 9 else []
        XF, WF, X8F, W8F = setregs(t)
        k = 0
        for u in range(4):
            for tt in range(2):
                e.mfma('32', QACC + tt * 16, WF + (u * 2 + tt) * 4, XF + u * 4, cin=(0 if (t == 0 and u == 0) else None))
                for o in ops[k:k + 3]: o()
                k += 3
        for u2 in range(2):
            e.mfma('16', QA8, W8F + u2 * 4, X8F + u2 * 4, cin=(0 if (t == 0 and u2 == 0) else None))
            for o in ops[k:k + 1]: o()
            k += 1
    TQ = 192
    for tt in range(2):
        for ip in range(2):
            for jj in range(4):
                a = QACC + tt * 16 + 8 * ip + 2 * jj
                d = TQ + (2 * tt + ip) * 4 + jj
                e.valu(f"v_cvt_pk_bf16_f32 v{d}, v{a}, v{a+1}", w=[R(d)], r=[R(a), R(a+1)])
    e.valu(f"v_cvt_pk_bf16_f32 v{TQ+16}, v{QA8}, v{QA8+1}", w=[R(TQ+16)], r=[R(QA8), R(QA8+1)])
    e.valu(f"v_cvt_pk_bf16_f32 v{TQ+17}, v{QA8+2}, v{QA8+3}", w=[R(TQ+17)], r=[R(QA8+2), R(QA8+3)])
    e.valu("v_bfe_u32 v4, v1, 4, 1", w=['v4'], r=['v1'])
    e.valu("v_lshlrev_b32 v4, 12, v4", w=['v4'], r=['v4'])
    e.valu("v_lshrrev_b32 v5, 5, v1", w=['v5'], r=['v1'])
    e.valu("v_lshlrev_b32 v5, 8, v5", w=['v5'], r=['v5'])
    e.valu("v_lshlrev_b32 v6, 4, v3", w=['v6'], r=['v3'])
    e.salu("s_lshl_b32 s33, s37, 13"); e.salu("s_lshl_b32 s36, s38, 11"); e.salu("s_add_u32 s33, s33, s36")
    e.salu(f"s_add_u32 s33, s33, {QX0}", w=['s33'])
    e.valu("v_add3_u32 v4, v4, v5, v6", w=['v4'], r=['v4', 'v5', 'v6'])
    e.valu("v_add_u32 v4, s33, v4", w=['v4'], r=['v4', 's33'])
    for tt in range(2):
        for ip in range(2):
            e.ds_write("ds_write_b128", 4, TQ + (2 * tt + ip) * 4, 4, tt * 1024 + ip * 512)
    e.valu("v_lshlrev_b32 v8, 4, v1", w=['v8'], r=['v1'])
    e.salu("s_lshr_b32 s33, s32, 1"); e.salu("s_lshl_b32 s33, s33, 10")
    e.salu("s_and_b32 s36, s32, 1"); e.salu("s_lshl_b32 s36, s36, 3"); e.salu("s_add_u32 s33, s33, s36")
    e.salu(f"s_add_u32 s33, s33, {X80}", w=['s33'])
    e.valu("v_add_u32 v5, s33, v8", w=['v5'], r=['v8', 's33'])
    e.ds_write("ds_write_b64", 5, TQ + 16, 2, 0)
    e.wait_lgkm()
    e.barrier()
    stamp(e, 10)
    e.salu("s_lshl_b32 s33, s32, 12"); e.salu(f"s_add_u32 s33, s33, {QX0}", w=['s33'])
    e.valu("v_add_u32 v4, s33, v8", w=['v4'], r=['v8', 's33'])
    for s in range(4):
        e.ds_read("ds_read_b128", QF + s * 4, 4, 4, s * 1024, 'q')
    e.valu(f"v_add_u32 v5, {X80}, v8", w=['v5'], r=['v8'])
    for s in range(4):
        e.ds_read("ds_read_b128", Q8 + s * 4, 4, 5, s * 1024, 'q')
    e.wait_lgkm()
    e.wait_vm(('K', 0))
    e.barrier()
    stamp(e, 11)
    if STGV and STAGGER: by_group(lambda: (dmaItem(5), dmaItem(6)), lambda: (dmaItem(9), dump([7, 8])))
    else: dmaItem(5); dmaItem(6)
    e.salu("s_lshl_b32 s3, s37, 12", w=['s3'])
    def V_(ops, t, w, r): ops.append(lambda: e.valu(t, w=w, r=r))
    def T_(ops, t, w, r): ops.append(lambda: e.trans(t, w=w, r=r))
    def qk_ops(j):
        sb = SB + (j & 1) * 16
        reg = region('K', j)
        pre = []
        V_(pre, f"v_add_u32 v{KA}, {reg}, v{vKA0}", [R(KA)], [R(vKA0)])
        for s in range(1, 4):
            V_(pre, f"v_xor_b32 v{KA+s}, {s<<6}, v{KA}", [R(KA+s)], [R(KA)])
        rds, mfs = [], []
        for k in range(16):
            kt, s = divmod(k, 4)
            rds.append(lambda k=k, kt=kt, s=s: e.ds_read("ds_read_b128", KF + (k % 6) * 4, 4, KA + s, kt * 4096, ('kf', j, k)))
            def mf(k=k, kt=kt, s=s):
                e.wait_lgkm(('kf', j, k))
                e.mfma('16', sb + kt * 4, KF + (k % 6) * 4, QF + s * 4, cin=(0 if s == 0 else None))
            mfs.append(mf)
        return pre, rds, mfs
    def pv_ops(j):
        b = SB + (j & 1) * 16
        reg = region('V', j)
        pre = []
        V_(pre, f"v_add_u32 v{VA}, {reg}, v{vVA0}", [R(VA)], [R(vVA0)])
        for T in range(1, 8):
            V_(pre, f"v_xor_b32 v{VA+T}, {T<<5}, v{VA}", [R(VA+T)], [R(VA)])
        rds, mfs = [], []
        for k in range(16):
            u, T = divmod(k, 8)
            def rd(k=k, u=u, T=T):
                for part in range(2):
                    e.ds_read("ds_read_b64_tr_b16", VF + (k % 6) * 4 + part * 2, 2, VA + T, (32 * u + 16 * part) * 256, ('vf', j, k))
            rds.append(rd)
            def mf(k=k, u=u, T=T):
                e.wait_lgkm(('vf', j, k))
                e.mfma('16', OA + T * 4, VF + (k % 6) * 4, b + 8 * u, cin=(0 if (j == 0 and u == 0) else None))
            mfs.append(mf)
        return pre, rds, mfs
    def xmax_ops(ops, t0, t1):
        V_(ops, f"v_mov_b32 v{t1}, v{t0}", [R(t1)], [R(t0)])
        ops.append(lambda: e.ins(f"v_permlane16_swap_b32 v{t0}, v{t1}", 'perm', w=[R(t0), R(t1)], r=[R(t0), R(t1)]))
        V_(ops, f"v_max_f32 v{t0}, v{t0}, v{t1}", [R(t0)], [R(t0), R(t1)])
        V_(ops, f"v_mov_b32 v{t1}, v{t0}", [R(t1)], [R(t0)])
        ops.append(lambda: e.ins(f"v_permlane32_swap_b32 v{t0}, v{t1}", 'perm', w=[R(t0), R(t1)], r=[R(t0), R(t1)]))
    def stats_ops(ops, first, M, L, MC, AL, flag, t0, t1):
        if first:
            V_(ops, f"v_max_f32 v{M}, v{t0}, v{t1}", [R(M)], [R(t0), R(t1)])
            V_(ops, f"v_mul_f32 v{MC}, s34, v{M}", [R(MC)], [R(M), 's34'])
            ops.append(lambda: e.salu(f"s_mov_b32 s{flag}, 0"))
        else:
            V_(ops, f"v_max_f32 v{t0}, v{t0}, v{t1}", [R(t0)], [R(t0), R(t1)])
            V_(ops, f"v_sub_f32 v{t1}, v{t0}, v{M}", [R(t1)], [R(M), R(t0)])
            def br():
                lab = newlab("lz")
                e.valu(f"v_cmp_lt_f32 vcc, s61, v{t1}", w=['vcc'], r=[R(t1), 's61'])
                e.salu(f"s_mov_b32 s{flag}, 0")
                e.nop(4)
                e.salu(f"s_cbranch_vccz {lab}")
                h = list(e.hist)
                e.valu(f"v_max_f32 v{t0}, v{t0}, v{M}", w=[R(t0)], r=[R(t0), R(M)])
                e.valu(f"v_sub_f32 v{t1}, v{M}, v{t0}", w=[R(t1)], r=[R(M), R(t0)])
                e.valu(f"v_mul_f32 v{t1}, s34, v{t1}", w=[R(t1)], r=[R(t1), 's34'])
                e.trans(f"v_exp_f32 v{AL}, v{t1}", w=[R(AL)], r=[R(t1)])
                e.valu(f"v_mov_b32 v{M}, v{t0}", w=[R(M)], r=[R(t0)])
                e.valu(f"v_mul_f32 v{MC}, s34, v{t0}", w=[R(MC)], r=[R(t0), 's34'])
                e.valu(f"v_mul_f32 v{L}, v{L}, v{AL}", w=[R(L)], r=[R(L), R(AL)])
                e.salu(f"s_mov_b32 s{flag}, 1")
                e.nop(2)
                e.raw(f"{lab}:")
                e.hist = h
            ops.append(br)
    def rescale(O, AL, flag):
        lab = newlab("rs")
        e.salu(f"s_cmp_eq_u32 s{flag}, 0"); e.salu(f"s_cbranch_scc1 {lab}")
        h = list(e.hist)
        e.nop(12)
        for k in range(32):
            e.valu(f"v_mul_f32 v{O+k}, v{O+k}, v{AL}", w=[R(O+k)], r=[R(O+k), R(AL)])
        e.nop(2)
        e.raw(f"{lab}:")
        e.hist = h
    def sm_ops(j):
        b = SB + (j & 1) * 16
        ops = []
        V_(ops, f"v_max3_f32 v{vT0}, v{b}, v{b+1}, v{b+2}", [R(vT0)], [R(b), R(b+1), R(b+2)])
        V_(ops, f"v_max3_f32 v{vT1}, v{b+3}, v{b+4}, v{b+5}", [R(vT1)], [R(b+3), R(b+4), R(b+5)])
        for k in range(6, 14, 4):
            V_(ops, f"v_max3_f32 v{vT0}, v{vT0}, v{b+k}, v{b+k+1}", [R(vT0)], [R(vT0), R(b+k), R(b+k+1)])
            V_(ops, f"v_max3_f32 v{vT1}, v{vT1}, v{b+k+2}, v{b+k+3}", [R(vT1)], [R(vT1), R(b+k+2), R(b+k+3)])
        V_(ops, f"v_max3_f32 v{vT0}, v{vT0}, v{b+14}, v{b+15}", [R(vT0)], [R(vT0), R(b+14), R(b+15)])
        V_(ops, f"v_max_f32 v{vT0}, v{vT0}, v{vT1}", [R(vT0)], [R(vT0), R(vT1)])
        xmax_ops(ops, vT0, vT1)
        stats_ops(ops, j == 0, vM, vL, vMC, vAL, 62, vT0, vT1)
        for k in range(16):
            V_(ops, f"v_fma_f32 v{b+k}, v{b+k}, s34, -v{vMC}", [R(b+k)], [R(b+k), 's34', R(vMC)])
        for k in range(16):
            T_(ops, f"v_exp_f32 v{b+k}, v{b+k}", [R(b+k)], [R(b+k)])
        V_(ops, f"v_add_f32 v{vT0}, v{b}, v{b+1}", [R(vT0)], [R(b), R(b+1)])
        V_(ops, f"v_add_f32 v{vT1}, v{b+2}, v{b+3}", [R(vT1)], [R(b+2), R(b+3)])
        for k in range(4, 16, 2):
            V_(ops, f"v_add_f32 v{vT0}, v{vT0}, v{b+k}", [R(vT0)], [R(vT0), R(b+k)])
            V_(ops, f"v_add_f32 v{vT1}, v{vT1}, v{b+k+1}", [R(vT1)], [R(vT1), R(b+k+1)])
        V_(ops, f"v_add_f32 v{vT0}, v{vT0}, v{vT1}", [R(vT0)], [R(vT0), R(vT1)])
        if j == 0:
            V_(ops, f"v_mov_b32 v{vL}, v{vT0}", [R(vL)], [R(vT0)])
        else:
            V_(ops, f"v_add_f32 v{vL}, v{vL}, v{vT0}", [R(vL)], [R(vL), R(vT0)])
        for u in range(2):
            for jj in range(4):
                d = b + 8 * u + jj; a = b + 8 * u + 2 * jj
                V_(ops, f"v_cvt_pk_bf16_f32 v{d}, v{a}, v{a+1}", [R(d)], [R(a), R(a+1)])
        return ops
    K8F = 208; V8F = 208
    aT0, aT1 = 246, 247
    def qk8_ops(j):
        reg = region('K', j)
        ops = []
        ops.append(lambda: e.salu(f"s_add_u32 s33, s3, {reg}", w=['s33']))
        V_(ops, f"v_add_u32 v{K8A}, s33, v{vKA0}", [R(K8A)], [R(vKA0), 's33'])
        for s in range(1, 4):
            V_(ops, f"v_xor_b32 v{K8A+s}, {s<<6}, v{K8A}", [R(K8A+s)], [R(K8A)])
        for s in range(4):
            ops.append(lambda s=s: e.ds_read("ds_read_b128", K8F + s * 4, 4, K8A + s, 0, ('k8', j, s)))
        mf = []
        for s in range(4):
            def f(s=s):
                e.wait_lgkm(('k8', j, s))
                e.mfma('16', S8, K8F + s * 4, Q8 + s * 4, cin=(0 if s == 0 else None))
            mf.append(f)
        first = j < 2
        sm8 = []
        V_(sm8, f"v_max3_f32 v{aT0}, v{S8}, v{S8+1}, v{S8+2}", [R(aT0)], vs(S8, 3))
        V_(sm8, f"v_max_f32 v{aT0}, v{aT0}, v{S8+3}", [R(aT0)], [R(aT0), R(S8+3)])
        xmax_ops(sm8, aT0, aT1)
        stats_ops(sm8, first, aM, aL, aMC, aAL, 63, aT0, aT1)
        for k in range(4):
            V_(sm8, f"v_fma_f32 v{S8+k}, v{S8+k}, s34, -v{aMC}", [R(S8+k)], [R(S8+k), 's34', R(aMC)])
        for k in range(4):
            T_(sm8, f"v_exp_f32 v{S8+k}, v{S8+k}", [R(S8+k)], [R(S8+k)])
        if not first:
            sm8.append(lambda: rescale(O8, aAL, 63))
        for k in range(4):
            if first and k == 0:
                V_(sm8, f"v_mov_b32 v{aL}, v{S8}", [R(aL)], [R(S8)])
            else:
                V_(sm8, f"v_add_f32 v{aL}, v{aL}, v{S8+k}", [R(aL)], [R(aL), R(S8+k)])
        V_(sm8, f"v_cvt_pk_bf16_f32 v{P8}, v{S8}, v{S8+1}", [R(P8)], [R(S8), R(S8+1)])
        V_(sm8, f"v_cvt_pk_bf16_f32 v{P8+1}, v{S8+2}, v{S8+3}", [R(P8+1)], [R(S8+2), R(S8+3)])
        return ops, mf, sm8
    def pv8_ops(j):
        ops = []
        for T in range(8):
            V_(ops, f"v_add_u32 v{V8A+T}, s3, v{VA+T}", [R(V8A+T)], [R(VA+T), 's3'])
        for T in range(8):
            ops.append(lambda T=T: e.ds_read("ds_read_b64_tr_b16", V8F + T * 2, 2, V8A + T, 0, ('v8', j, T)))
        mf = []
        for T in range(8):
            def f(T=T):
                e.wait_lgkm(('v8', j, T))
                e.mfma('16h', O8 + T * 4, V8F + T * 2, P8, cin=(0 if j < 2 else None))
            mf.append(f)
        return ops, mf
    def run(mfs, rds_after, fill):
        n = len(mfs); d = 0
        for k in range(n):
            mfs[k]()
            for r_ in rds_after[k]: r_()
            tgt = (len(fill) * (k + 1)) // n
            while d < tgt:
                fill[d](); d += 1
        while d < len(fill):
            fill[d](); d += 1
    e.salu(f"s_mov_b32 s61, {f32bits(THR):#x}")
    labG1 = newlab("G"); labEnd = newlab("GE")
    e.salu("s_cmp_eq_u32 s38, 1"); e.salu(f"s_cbranch_scc1 {labG1}")
    vm0 = list(e.vm); h0 = list(e.hist)
    PRE = 6
    for g in range(2):
        if g == 1:
            e.raw(f"{labG1}:")
            e.vm = list(vm0); e.hist = list(h0); e.lgkm = []
            if PRIO: e.salu("s_setprio 1")
        kpre, krd, kmf = qk_ops(0)
        for o in kpre: o()
        for o in krd[:PRE]: o()
        fill = []
        if g == 0:
            o8, m8, s8 = qk8_ops(0)
            fill = o8 + m8
        run(kmf, [[krd[k + PRE]] if k + PRE < 16 else [] for k in range(16)], fill)
        for o in sm_ops(0): o()
        if g == 0:
            for o in s8: o()
        for j in range(8):
            e.wait_lgkm()
            if j < 7: e.wait_vm(('K', j + 1))
            e.wait_vm(('V', j))
            if j == 7: e.wait_vm('wo')
            e.barrier()
            stamp(e, 12 + j)
            vpre, vrd, vmf = pv_ops(j)
            if j < 7:
                kpre, krd, kmf = qk_ops(j + 1)
                for o in kpre: o()
                for o in krd[:PRE]: o()
                g1a = {0: 10, 1: 11, 2: 13, 3: 15}.get(j)
                if 2 * j + 7 < 16:
                    if STGV and STAGGER: by_group(lambda: dmaItem(2 * j + 7), lambda: dmaItem(g1a) if g1a else None)
                    else: dmaItem(2 * j + 7)
                for o in vpre: o()
                fillA, fillB8 = [], []
                if ((j + 1) & 1) == g:
                    o8, m8, s8 = qk8_ops(j + 1)
                    fillA = o8 + m8; fillB8 = s8
                else:
                    o8, m8 = pv8_ops(j)
                    fillA = o8 + m8
                after = []
                for k in range(16):
                    l = []
                    if k + PRE < 16: l.append(krd[k + PRE])
                    else: l.append(vrd[k + PRE - 16])
                    after.append(l)
                if j == 4: stamp(e, 23)
                run(kmf, after, fillA)
                if j == 4: stamp(e, 24)
                g1b = {1: 12, 2: 14}.get(j)
                if 2 * j + 8 < 16:
                    if STGV and STAGGER: by_group(lambda: dmaItem(2 * j + 8), lambda: dmaItem(g1b) if g1b else None)
                    else: dmaItem(2 * j + 8)
                if j == 5:
                    e.salu("s_mul_i32 s33, s2, 18432")
                    e.salu("s_add_u32 s56, s56, s33"); e.salu("s_addc_u32 s57, s57, 0"); e.salu("s_and_b32 s57, s57, 0xffff")
                    e.salu("s_mov_b32 s58, 18432"); e.salu("s_mov_b32 s59, 0x00020000")
                    e.salu("s_mul_i32 s33, s32, 3072", w=['s33'])
                    for i in range(3):
                        e.salu(f"s_add_u32 s36, s33, {i*1024}", w=['s36'])
                        e.salu(f"s_add_u32 m0, s33, {6*REG + i*1024}", w=['m0'])
                        e.dma(8, 56, 36, 'wo')
                if j == 4: stamp(e, 25)
                run(vmf, [[vrd[k + PRE]] if k + PRE < 16 else [] for k in range(16)], fillB8 + sm_ops(j + 1))
                if j == 4: stamp(e, 26)
                rescale(OA, vAL, 62)
                if j == 4: stamp(e, 27)
            else:
                for o in vpre: o()
                for o in vrd[:PRE]: o()
                fill = []
                if (j & 1) == g:
                    o8, m8 = pv8_ops(j)
                    fill = o8 + m8
                run(vmf, [[vrd[k + PRE]] if k + PRE < 16 else [] for k in range(16)], fill)
        e.wait_lgkm()
        if g == 0:
            e.salu(f"s_branch {labEnd}")
    e.label(labEnd)
    stamp(e, 20)
    def xsum(L):
        e.valu(f"v_mov_b32 v{vT1}, v{L}", w=[R(vT1)], r=[R(L)])
        e.ins(f"v_permlane16_swap_b32 v{L}, v{vT1}", 'perm', w=[R(L), R(vT1)], r=[R(L), R(vT1)])
        e.valu(f"v_add_f32 v{L}, v{L}, v{vT1}", w=[R(L)], r=[R(L), R(vT1)])
        e.valu(f"v_mov_b32 v{vT1}, v{L}", w=[R(vT1)], r=[R(L)])
        e.ins(f"v_permlane32_swap_b32 v{L}, v{vT1}", 'perm', w=[R(L), R(vT1)], r=[R(L), R(vT1)])
        e.valu(f"v_add_f32 v{L}, v{L}, v{vT1}", w=[R(L)], r=[R(L), R(vT1)])
    xsum(aL)
    O8X = [7 * REG, 8 * REG, 9 * REG, 0]
    MLX = 1 * REG
    e.salu("s_lshr_b32 s33, s32, 1"); e.salu("s_add_u32 s33, s33, 7"); e.salu("s_cmp_eq_u32 s33, 10"); e.salu("s_cselect_b32 s33, 0, s33")
    e.salu("s_lshl_b32 s33, s33, 14"); e.salu("s_and_b32 s36, s32, 1"); e.salu("s_lshl_b32 s36, s36, 13"); e.salu("s_add_u32 s33, s33, s36", w=['s33'])
    e.valu("v_add_u32 v4, s33, v8", w=['v4'], r=['v8', 's33'])
    for T in range(8):
        e.ds_write("ds_write_b128", 4, O8 + T * 4, 4, T * 1024)
    assert aL == aM + 1 and aM % 2 == 0
    e.valu("v_lshrrev_b32 v5, 1, v8", w=['v5'], r=['v8'])
    e.salu("s_lshl_b32 s33, s32, 9"); e.salu(f"s_add_u32 s33, s33, {MLX}", w=['s33'])
    e.valu("v_add_u32 v6, s33, v5", w=['v6'], r=['v5', 's33'])
    e.ds_write("ds_write_b64", 6, aM, 2, 0)
    xsum(vL)
    e.trans(f"v_rcp_f32 v{vAL}, v{vL}", w=[R(vAL)], r=[R(vL)])
    e.salu("s_mul_i32 s33, s31, 9"); e.salu("s_add_u32 s33, s33, s32")
    e.salu("s_lshl_b32 s33, s33, 7"); e.salu("s_lshl_b32 s36, s30, 2"); e.salu("s_add_u32 s33, s33, s36")
    e.salu("s_lshl_b32 s33, s33, 10", w=['s33'])
    e.wait_lgkm()
    e.barrier()
    stamp(e, 21)
    AML = 160; AO = 176
    e.valu(f"v_add_u32 v6, {MLX}, v5", w=['v6'], r=['v5'])
    for w2 in range(8):
        e.ds_read("ds_read_b64", AML + w2 * 2, 2, 6, w2 * 512, 'aml')
    e.salu("s_lshl_b32 s36, s32, 10", w=['s36'])
    e.valu("v_add_u32 v7, s36, v8", w=['v7'], r=['v8', 's36'])
    e.valu(f"v_add_u32 v6, {7*REG}, v7", w=['v6'], r=['v7'])
    for w2 in range(8):
        if w2 < 6:
            e.ds_read("ds_read_b128", AO + w2 * 4, 4, 6, w2 * 8192, 'ao')
        else:
            e.ds_read("ds_read_b128", AO + w2 * 4, 4, 7, (w2 - 6) * 8192, 'ao')
    for u in range(4):
        b = OA + u * 8
        d = SB + u * 4
        for jj in range(8):
            e.valu(f"v_mul_f32 v{b+jj}, v{b+jj}, v{vAL}", w=[R(b+jj)], r=[R(b+jj), R(vAL)])
        for jj in range(4):
            e.valu(f"v_cvt_pk_bf16_f32 v{d+jj}, v{b+2*jj}, v{b+2*jj+1}", w=[R(d+jj)], r=[R(b+2*jj), R(b+2*jj+1)])
        e.bstore(d, 4, 8, 24, 33, u * 1024)
    e.wait_lgkm('aml')
    e.valu(f"v_max3_f32 v{vT0}, v{AML}, v{AML+2}, v{AML+4}", w=[R(vT0)], r=[R(AML), R(AML+2), R(AML+4)])
    e.valu(f"v_max3_f32 v{vT0}, v{vT0}, v{AML+6}, v{AML+8}", w=[R(vT0)], r=[R(vT0), R(AML+6), R(AML+8)])
    e.valu(f"v_max3_f32 v{vT0}, v{vT0}, v{AML+10}, v{AML+12}", w=[R(vT0)], r=[R(vT0), R(AML+10), R(AML+12)])
    e.valu(f"v_max_f32 v{vT0}, v{vT0}, v{AML+14}", w=[R(vT0)], r=[R(vT0), R(AML+14)])
    for w2 in range(8):
        a = AML + 2 * w2
        e.valu(f"v_sub_f32 v{a}, v{a}, v{vT0}", w=[R(a)], r=[R(a), R(vT0)])
        e.valu(f"v_mul_f32 v{a}, s34, v{a}", w=[R(a)], r=[R(a), 's34'])
    for w2 in range(8):
        a = AML + 2 * w2
        e.trans(f"v_exp_f32 v{a}, v{a}", w=[R(a)], r=[R(a)])
    e.valu(f"v_mul_f32 v{vT1}, v{AML}, v{AML+1}", w=[R(vT1)], r=[R(AML), R(AML+1)])
    for w2 in range(1, 8):
        a = AML + 2 * w2
        e.valu(f"v_fma_f32 v{vT1}, v{a}, v{a+1}, v{vT1}", w=[R(vT1)], r=[R(a), R(a+1), R(vT1)])
    e.trans(f"v_rcp_f32 v{vT1}, v{vT1}", w=[R(vT1)], r=[R(vT1)])
    e.wait_lgkm('ao')
    for k in range(4):
        e.valu(f"v_mul_f32 v{AO+k}, v{AO+k}, v{AML}", w=[R(AO+k)], r=[R(AO+k), R(AML)])
        for w2 in range(1, 8):
            e.valu(f"v_fma_f32 v{AO+k}, v{AO+w2*4+k}, v{AML+2*w2}, v{AO+k}", w=[R(AO+k)], r=[R(AO+w2*4+k), R(AML+2*w2), R(AO+k)])
        e.valu(f"v_mul_f32 v{AO+k}, v{AO+k}, v{vT1}", w=[R(AO+k)], r=[R(AO+k), R(vT1)])
    e.valu(f"v_cvt_pk_bf16_f32 v{AO+4}, v{AO}, v{AO+1}", w=[R(AO+4)], r=[R(AO), R(AO+1)])
    e.valu(f"v_cvt_pk_bf16_f32 v{AO+5}, v{AO+2}, v{AO+3}", w=[R(AO+5)], r=[R(AO+2), R(AO+3)])
    e.salu("s_mul_i32 s33, s31, 9"); e.salu("s_add_u32 s33, s33, 8"); e.salu("s_lshl_b32 s33, s33, 7")
    e.salu("s_lshl_b32 s36, s30, 2"); e.salu("s_add_u32 s33, s33, s36"); e.salu("s_lshr_b32 s36, s32, 1"); e.salu("s_add_u32 s33, s33, s36")
    e.salu("s_lshl_b32 s33, s33, 10"); e.salu("s_and_b32 s36, s32, 1"); e.salu("s_lshl_b32 s36, s36, 3")
    e.salu("s_add_u32 s33, s33, s36", w=['s33'])
    e.bstore(AO + 4, 2, 8, 24, 33, 0)
    if STAMP: e.wait_vm()
    stamp(e, 22)
    stamp_out(e, 28)
    e.raw(f"{name}_done:")
    e.raw("    s_endpgm")
    return e.text(), 256
```

```python
from em import *

K2_D = 8
def gen_k2(name):
    e = Em()
    e.raw(f".globl {name}\n.p2align 8\n.type {name},@function\n{name}:")
    e.salu("s_cmp_ge_u32 s2, 216", r=['s2'])
    e.salu(f"s_cbranch_scc1 {name}_done")
    e.salu("s_load_dwordx2 s[4:5], s[0:1], 32", w=ss(4,2))
    e.salu("s_load_dwordx2 s[6:7], s[0:1], 40", w=ss(6,2))
    e.salu("s_load_dwordx2 s[20:21], s[0:1], 56", w=ss(20,2))
    e.salu("s_and_b32 s22, s2, 7", w=['s22'])
    e.salu("s_lshr_b32 s23, s2, 3", w=['s23'])
    e.salu("s_mul_i32 s24, s23, 0x5556", w=['s24'])
    e.salu("s_lshr_b32 s24, s24, 16", w=['s24'])
    e.salu("s_mul_i32 s25, s24, 3", w=['s25'])
    e.salu("s_sub_u32 s25, s23, s25", w=['s25'])
    e.valu("v_and_b32 v1, 63, v0", w=['v1'], r=['v0'])
    e.valu("v_lshrrev_b32 v2, 6, v0", w=['v2'], r=['v0'])
    e.ins("v_readfirstlane_b32 s26, v2", 'rfl', w=['s26'], r=['v2'])
    e.ins("s_waitcnt lgkmcnt(0)", 'wait')
    e.salu("s_mov_b32 s8, s4"); e.salu("s_and_b32 s9, s5, 0xffff")
    e.salu(f"s_mov_b32 s10, {4096*1152}"); e.salu("s_mov_b32 s11, 0x00020000")
    e.salu("s_mov_b32 s12, s20"); e.salu("s_and_b32 s13, s21, 0xffff")
    e.salu(f"s_mov_b32 s14, {72*128*1024}"); e.salu("s_mov_b32 s15, 0x00020000")
    e.salu("s_mov_b32 s16, s6"); e.salu("s_and_b32 s17, s7, 0xffff")
    e.salu(f"s_mov_b32 s18, {1152*1152}"); e.salu("s_mov_b32 s19, 0x00020000")
    e.salu("s_mul_i32 s27, s22, 9"); e.salu("s_mul_i32 s28, s25, 3"); e.salu("s_add_u32 s27, s27, s28")
    e.salu("s_lshl_b32 s27, s27, 7")
    e.salu("s_lshl_b32 s28, s26, 5", r=['s26'])
    e.salu("s_add_u32 s27, s27, s28")
    e.salu("s_lshl_b32 s27, s27, 10")
    e.salu(f"s_mul_i32 s28, s26, {1024*1152}", r=['s26'])
    e.salu("s_lshl_b32 s29, s24, 7")
    e.salu("s_add_u32 s28, s28, s29")
    e.salu("s_lshl_b32 s29, s26, 15", r=['s26'])
    e.valu("v_lshlrev_b32 v4, 4, v1", w=['v4'], r=['v1'])
    e.valu("v_add_u32 v5, 0x20000, v4", w=['v5'], r=['v4'])
    e.valu("v_add_u32 v6, 0x40000, v4", w=['v6'], r=['v4'])
    e.valu("v_lshrrev_b32 v2, 3, v1", w=['v2'], r=['v1'])
    e.valu("v_mul_u32_u24 v2, 1152, v2", w=['v2'], r=['v2'])
    e.valu("v_lshrrev_b32 v3, 4, v1", w=['v3'], r=['v1'])
    e.valu("v_lshlrev_b32 v3, 1, v3", w=['v3'], r=['v3'])
    e.valu("v_and_b32 v7, 7, v1", w=['v7'], r=['v1'])
    e.valu("v_xor_b32 v3, v3, v7", w=['v3'], r=['v3', 'v7'])
    e.valu("v_lshlrev_b32 v7, 4, v3", w=['v7'], r=['v3'])
    e.valu("v_add_u32 v8, v2, v7", w=['v8'], r=['v2', 'v7'])
    e.valu(f"v_add_u32 v9, {8*1152}, v8", w=['v9'], r=['v8'])
    e.valu(f"v_add_u32 v10, {16*1152}, v8", w=['v10'], r=['v8'])
    e.valu(f"v_add_u32 v11, {24*1152}, v8", w=['v11'], r=['v8'])
    e.valu("v_lshrrev_b32 v2, 4, v1", w=['v2'], r=['v1'])
    e.valu("v_bfe_u32 v3, v1, 2, 2", w=['v3'], r=['v1'])
    e.valu("v_lshlrev_b32 v7, 2, v2", w=['v7'], r=['v2'])
    e.valu("v_add_u32 v7, v7, v3", w=['v7'], r=['v7', 'v3'])
    e.valu("v_lshlrev_b32 v7, 7, v7", w=['v7'], r=['v7'])
    e.valu("v_lshrrev_b32 v3, 1, v3", w=['v3'], r=['v3'])
    e.valu("v_and_b32 v2, 1, v2", w=['v2'], r=['v2'])
    e.valu("v_lshlrev_b32 v2, 1, v2", w=['v2'], r=['v2'])
    e.valu("v_or_b32 v2, v2, v3", w=['v2'], r=['v2', 'v3'])
    e.valu("v_lshlrev_b32 v2, 1, v2", w=['v2'], r=['v2'])
    e.valu("v_bfe_u32 v3, v1, 1, 1", w=['v3'], r=['v1'])
    e.valu("v_xor_b32 v2, v2, v3", w=['v2'], r=['v2', 'v3'])
    e.valu("v_lshlrev_b32 v2, 4, v2", w=['v2'], r=['v2'])
    e.valu("v_add_u32 v7, v7, v2", w=['v7'], r=['v7', 'v2'])
    e.valu("v_and_b32 v3, 1, v1", w=['v3'], r=['v1'])
    e.valu("v_lshlrev_b32 v3, 3, v3", w=['v3'], r=['v3'])
    e.valu("v_add_u32 v7, v7, v3", w=['v7'], r=['v7', 'v3'])
    e.valu("v_add_u32 v12, s29, v7", w=['v12'], r=['v7', 's29'])
    for ct in range(1, 4):
        e.valu(f"v_xor_b32 v{12+ct}, {ct<<5}, v12", w=[f'v{12+ct}'], r=['v12'])
    ACC = 16
    OF = 64
    AF = 64 + 12 * K2_D
    D = K2_D
    def issue(i):
        slot = i % D
        for n in range(4):
            e.salu(f"s_add_u32 m0, s29, {slot*4096 + n*1024}", w=['m0'], r=['s29'])
            e.dma(8 + n, 8, 28, ('w', i))
        for rt in range(3):
            e.bload(OF + slot * 12 + rt * 4, 4, 4 + rt, 12, 27, 0, ('o', i))
        e.salu(f"s_add_u32 s28, s28, {32*1152}", w=['s28'])
        e.salu("s_add_u32 s27, s27, 1024", w=['s27'])
    def reads(i):
        slot = i % D
        ab = AF + (i & 1) * 16
        for ct in range(4):
            for part in range(2):
                e.ds_read("ds_read_b64_tr_b16", ab + ct * 4 + part * 2, 2, 12 + ct, slot * 4096 + part * 2048, ('a', i, ct))
    for i in range(D):
        issue(i)
    e.wait_vm(('o', 0))
    reads(0)
    for i in range(32):
        if i + 1 < 32:
            e.wait_vm(('o', i + 1))
            reads(i + 1)
        slot = i % D
        ab = AF + (i & 1) * 16
        for ct in range(4):
            e.wait_lgkm(('a', i, ct))
            for rt in range(3):
                e.mfma('16', ACC + (ct * 3 + rt) * 4, ab + ct * 4, OF + slot * 12 + rt * 4, cin=(0 if i == 0 else None))
        if i + D < 32:
            issue(i + D)
    e.barrier()
    e.valu("v_and_b32 v2, 15, v1", w=['v2'], r=['v1'])
    e.valu("v_mul_u32_u24 v2, 272, v2", w=['v2'], r=['v2'])
    e.valu("v_lshrrev_b32 v3, 4, v1", w=['v3'], r=['v1'])
    e.valu("v_lshlrev_b32 v3, 4, v3", w=['v3'], r=['v3'])
    e.valu("v_add_u32 v2, v2, v3", w=['v2'], r=['v2', 'v3'])
    e.salu("s_mul_i32 s30, s26, 13056", w=['s30'])
    e.valu("v_add_u32 v2, s30, v2", w=['v2'], r=['v2', 's30'])
    for ct in range(4):
        for rt in range(3):
            e.ds_write("ds_write_b128", 2, ACC + (ct * 3 + rt) * 4, 4, rt * 16 * 272 + ct * 64)
    e.wait_lgkm()
    e.barrier()
    e.valu("v_lshrrev_b32 v2, 4, v0", w=['v2'], r=['v0'])
    e.valu("v_and_b32 v3, 15, v0", w=['v3'], r=['v0'])
    e.valu("v_mul_u32_u24 v4, 272, v2", w=['v4'], r=['v2'])
    e.valu("v_lshlrev_b32 v5, 4, v3", w=['v5'], r=['v3'])
    e.valu("v_add_u32 v4, v4, v5", w=['v4'], r=['v4', 'v5'])
    R = 64
    for i in range(3):
        for w in range(4):
            e.ds_read("ds_read_b128", R + (i * 4 + w) * 4, 4, 4, i * 16 * 272 + w * 13056, ('r', i))
    e.salu("s_mul_i32 s30, s22, 144"); e.salu("s_mul_i32 s31, s25, 48"); e.salu("s_add_u32 s30, s30, s31")
    e.salu("s_mul_i32 s30, s30, 1152"); e.salu("s_lshl_b32 s31, s24, 7"); e.salu("s_add_u32 s30, s30, s31", w=['s30'])
    e.valu("v_mul_u32_u24 v5, 1152, v2", w=['v5'], r=['v2'])
    e.valu("v_lshlrev_b32 v6, 3, v3", w=['v6'], r=['v3'])
    e.valu("v_add_u32 v5, v5, v6", w=['v5'], r=['v5', 'v6'])
    for i in range(3):
        e.wait_lgkm(('r', i))
        b0 = R + i * 16
        for j in range(4):
            e.valu(f"v_add_f32 v{b0+j}, v{b0+j}, v{b0+4+j}", w=[f'v{b0+j}'], r=[f'v{b0+j}', f'v{b0+4+j}'])
            e.valu(f"v_add_f32 v{b0+8+j}, v{b0+8+j}, v{b0+12+j}", w=[f'v{b0+8+j}'], r=[f'v{b0+8+j}', f'v{b0+12+j}'])
        for j in range(4):
            e.valu(f"v_add_f32 v{b0+j}, v{b0+j}, v{b0+8+j}", w=[f'v{b0+j}'], r=[f'v{b0+j}', f'v{b0+8+j}'])
        e.valu(f"v_cvt_pk_bf16_f32 v{b0+4}, v{b0}, v{b0+1}", w=[f'v{b0+4}'], r=[f'v{b0}', f'v{b0+1}'])
        e.valu(f"v_cvt_pk_bf16_f32 v{b0+5}, v{b0+2}, v{b0+3}", w=[f'v{b0+5}'], r=[f'v{b0+2}', f'v{b0+3}'])
        if i > 0:
            e.valu(f"v_add_u32 v5, {16*1152}, v5", w=['v5'], r=['v5'])
        e.bstore(b0 + 4, 2, 5, 16, 30, 0)
    e.raw(f"{name}_done:")
    e.raw("    s_endpgm")
    nv = AF + 32
    return e.text(), nv

def desc(name, nv, ns=40):
    nv8 = (nv + 7) // 8 * 8
    return f""".amdhsa_kernel {name}
  .amdhsa_next_free_vgpr {nv8}
  .amdhsa_next_free_sgpr {ns}
  .amdhsa_accum_offset {nv8}
  .amdhsa_group_segment_fixed_size 0
  .amdhsa_kernarg_size 64
  .amdhsa_user_sgpr_count 2
  .amdhsa_user_sgpr_kernarg_segment_ptr 1
  .amdhsa_system_sgpr_workgroup_id_x 1
.end_amdhsa_kernel
"""
```

```python
import k1d as k1c
from k1d import gen_k1
import os
if 'LEAD' in os.environ: k1c.LEAD = int(os.environ['LEAD'])
if 'AUXPRIO' in os.environ: k1c.AUXPRIO = True
if 'KVT' in os.environ: k1c.KVT = int(os.environ['KVT'])
for k in ('STAGGER','STGV','PRIO'):
    if k in os.environ: setattr(k1c, k, os.environ[k] == '1')
from k2 import desc
from k2f import gen_k2
import sys
hdr = open('standalone__mha_block_cached__near_ridge.s.ref').read().split('; Override')[0]
t1, nv1 = gen_k1("attn_kernel")
t2, nv2 = gen_k2("oproj_kernel")
s = hdr
s += "; @launch kernel=attn_kernel grid=(256,1,1) block=(512,1,1) lds=163840\n"
s += "; @launch kernel=oproj_kernel grid=(216,1,1) block=(256,1,1) lds=52224\n"
s += '.amdgcn_target "amdgcn-amd-amdhsa--gfx950"\n.text\n' + t1 + t2
s += '.section .rodata,"a"\n.p2align 6\n' + desc("attn_kernel", nv1, 64) + ".p2align 6\n" + desc("oproj_kernel", nv2, 64)
out = sys.argv[1] if len(sys.argv) > 1 else "standalone__mha_block_cached__near_ridge.s"
open(out, "w").write(s)
print(len(s), nv1, nv2)
```

```python
from em import *
import math, struct
CSC = 128 ** -0.5 * math.log2(math.e)
def f32bits(x): return struct.unpack('<I', struct.pack('<f', x))[0]

REG = 16384
XR0 = 49152; XSZ = 18432
WQ0 = 114688; WSZ = 16384
QX0 = 131072
X80 = 114688
STGREG = {3: 32, 4: 40, 5: 48, 6: 56, 7: 112, 8: 120}
NEARLY = 3
THR = 8.0 / CSC
ITEMS = [('K', 0), ('K', 1), ('V', 0), ('K', 2), ('V', 1), ('K', 3), ('V', 2), ('K', 4), ('V', 3), ('K', 5),
         ('V', 4), ('K', 6), ('V', 5), ('K', 7), ('V', 6), ('V', 7)]
def region(kind, j): return (ITEMS.index((kind, j)) % 10) * REG
STAMP = False
STAGGER = True
STGV = False
PRIO = False
def stamp(e, idx):
    if not STAMP: return
    e.ins("s_memtime s[40:41]", 'salu', w=['s40', 's41'])
    e.ins("s_waitcnt lgkmcnt(0)", 'wait'); e.lgkm = []
    e.salu(f"s_mov_b32 s{64+idx}, s40", w=[f's{64+idx}'])
def stamp_out(e, n):
    if not STAMP: return
    e.salu("s_mov_b32 s44, s28"); e.salu("s_and_b32 s45, s29, 0xffff"); e.salu("s_mov_b32 s46, 0x8000000"); e.salu("s_mov_b32 s47, 0x00020000")
    e.salu("s_lshl_b32 s42, s2, 3"); e.salu("s_add_u32 s42, s42, s32")
    e.salu("s_lshl_b32 s42, s42, 7"); e.salu("s_add_u32 s42, s42, 0x4000000", w=['s42'])
    e.valu("v_mov_b32 v3, 0", w=['v3'])
    for i in range(n):
        e.valu(f"v_mov_b32 v4, s{64+i}", w=['v4'], r=[f's{64+i}'])
        e.bstore(4, 1, 3, 44, 42, 4 * i)
        e.ins("s_waitcnt vmcnt(0)", 'wait'); e.vm = []

R = lambda x: f'v{x}'
KA, VA = 10, 18
vM, vL, vMC, vAL, vT0, vT1, vL2 = 22, 23, 24, 25, 26, 27, 9
vKA0, vVA0, vKO, vVO = 28, 29, 30, 31
QF, OA, SB, KF, VF = 32, 64, 128, 192, 216
Q8, O8, S8, P8, K8F, V8F = 32, 64, 96, 100, 104, 120
vXO, vWQO = 100, 101
def PBr(j, ks): return SB + (j & 1) * 32 + (ks >> 1) * 16 + (ks & 1) * 8

def gen_k1(name):
    e = Em()
    nlab = [0]
    def newlab(tag):
        nlab[0] += 1
        return f"{name}_{tag}{nlab[0]}"
    e.raw(f".globl {name}\n.p2align 8\n.type {name},@function\n{name}:")
    e.salu("s_cmp_ge_u32 s2, 256", r=['s2'])
    e.salu(f"s_cbranch_scc1 {name}_done")
    e.salu("s_load_dwordx4 s[4:7], s[0:1], 0", w=ss(4, 4))
    e.salu("s_load_dwordx4 s[24:27], s[0:1], 16", w=ss(24, 4))
    e.salu("s_load_dwordx2 s[28:29], s[0:1], 56", w=ss(28, 2))
    e.salu("s_load_dwordx2 s[56:57], s[0:1], 32", w=ss(56, 2))
    e.salu("s_and_b32 s30, s2, 7"); e.salu("s_lshl_b32 s30, s30, 2")
    e.salu("s_lshr_b32 s31, s2, 3"); e.salu("s_and_b32 s31, s31, 3")
    e.salu("s_add_u32 s30, s30, s31")
    e.salu("s_lshr_b32 s31, s2, 5")
    e.salu("s_and_b32 s60, s31, 1")
    e.valu("v_and_b32 v1, 63, v0", w=['v1'], r=['v0'])
    e.valu("v_lshrrev_b32 v2, 6, v0", w=['v2'], r=['v0'])
    e.ins("v_readfirstlane_b32 s32, v2", 'rfl', w=['s32'], r=['v2'])
    e.valu("v_lshrrev_b32 v2, 4, v1", w=['v2'], r=['v1'])
    e.valu("v_and_b32 v3, 15, v1", w=['v3'], r=['v1'])
    e.salu("s_lshl_b32 s35, s32, 10", w=['s35'], r=['s32'])
    e.salu("s_lshl_b32 s33, s32, 2", w=['s33'])
    e.valu("v_add_u32 v4, s33, v2", w=['v4'], r=['v2', 's33'])
    e.salu("s_and_b32 s33, s32, 3"); e.salu("s_lshl_b32 s33, s33, 2", w=['s33'])
    e.valu("v_add_u32 v7, s33, v2", w=['v7'], r=['v2', 's33'])
    e.valu("v_xor_b32 v5, v7, v3", w=['v5'], r=['v7', 'v3'])
    e.valu("v_lshlrev_b32 v5, 4, v5", w=['v5'], r=['v5'])
    e.valu("v_lshlrev_b32 v6, 8, v7", w=['v6'], r=['v7'])
    e.valu(f"v_add_u32 v{vKO}, v6, v5", w=[R(vKO)], r=['v6', 'v5'])
    e.salu("s_and_b32 s33, s32, 1"); e.salu("s_lshl_b32 s33, s33, 1", w=['s33'])
    e.valu("v_lshlrev_b32 v5, 2, v2", w=['v5'], r=['v2'])
    e.valu("v_or_b32 v5, s33, v5", w=['v5'], r=['v5', 's33'])
    e.valu("v_xor_b32 v5, v5, v3", w=['v5'], r=['v5', 'v3'])
    e.valu("v_lshlrev_b32 v5, 4, v5", w=['v5'], r=['v5'])
    e.valu(f"v_add_u32 v{vVO}, v6, v5", w=[R(vVO)], r=['v6', 'v5'])
    e.salu("s_and_b32 s44, s32, 3"); e.salu("s_lshl_b32 s44, s44, 10", w=['s44'])
    e.salu("s_lshr_b32 s38, s32, 2", w=['s38'])
    e.valu("v_lshlrev_b32 v5, 2, v2", w=['v5'], r=['v2'])
    e.valu("v_xor_b32 v5, v5, v3", w=['v5'], r=['v5', 'v3'])
    e.valu("v_lshlrev_b32 v5, 4, v5", w=['v5'], r=['v5'])
    e.valu("v_lshlrev_b32 v6, 13, v4", w=['v6'], r=['v4'])
    e.valu(f"v_add_u32 v{vWQO}, v6, v5", w=[R(vWQO)], r=['v6', 'v5'])
    e.salu("s_and_b32 s33, s32, 1"); e.salu("s_lshl_b32 s33, s33, 2", w=['s33'])
    e.valu("v_or_b32 v5, s33, v2", w=['v5'], r=['v2', 's33'])
    e.valu("v_and_b32 v6, 7, v1", w=['v6'], r=['v1'])
    e.valu("v_xor_b32 v5, v5, v6", w=['v5'], r=['v5', 'v6'])
    e.valu("v_lshlrev_b32 v5, 4, v5", w=['v5'], r=['v5'])
    e.valu("v_lshrrev_b32 v6, 3, v1", w=['v6'], r=['v1'])
    e.salu("s_lshl_b32 s33, s32, 3", w=['s33'])
    e.valu("v_add_u32 v6, s33, v6", w=['v6'], r=['v6', 's33'])
    e.valu("v_mul_u32_u24 v6, 1152, v6", w=['v6'], r=['v6'])
    e.valu(f"v_add_u32 v{vXO}, v6, v5", w=[R(vXO)], r=['v6', 'v5'])
    e.salu("s_and_b32 s33, s32, 1"); e.salu("s_lshl_b32 s39, s33, 3"); e.salu("s_add_u32 s39, s39, 128")
    e.salu("s_lshl_b32 s43, s32, 3"); e.salu("s_sub_u32 s39, s39, s43"); e.salu("s_mul_i32 s39, s39, 1152")
    e.salu("s_add_u32 s43, s33, 16"); e.salu("s_lshl_b32 s43, s43, 10", w=['s43'])
    e.ins("s_waitcnt lgkmcnt(0)", 'wait')
    stamp(e, 0)
    e.salu("s_mul_i32 s33, s31, 165888")
    e.salu("s_add_u32 s8, s4, s33"); e.salu("s_addc_u32 s9, s5, 0"); e.salu("s_and_b32 s9, s9, 0xffff")
    e.salu("s_mov_b32 s10, 165888"); e.salu("s_mov_b32 s11, 0x00020000")
    e.salu("s_lshl_b32 s33, s31, 5"); e.salu("s_add_u32 s33, s33, s30"); e.salu("s_lshl_b32 s33, s33, 17")
    e.salu("s_add_u32 s12, s6, s33"); e.salu("s_addc_u32 s13, s7, 0"); e.salu("s_and_b32 s13, s13, 0xffff")
    e.salu("s_mov_b32 s14, 131072"); e.salu("s_mov_b32 s15, 0x00020000")
    e.salu("s_add_u32 s16, s24, s33"); e.salu("s_addc_u32 s17, s25, 0"); e.salu("s_and_b32 s17, s17, 0xffff")
    e.salu("s_mov_b32 s18, 131072"); e.salu("s_mov_b32 s19, 0x00020000")
    e.salu("s_lshl_b32 s33, s30, 8")
    e.salu("s_add_u32 s20, s26, s33"); e.salu("s_addc_u32 s21, s27, 0"); e.salu("s_and_b32 s21, s21, 0xffff")
    e.salu(f"s_sub_u32 s22, {576*8192}, s33"); e.salu("s_mov_b32 s23, 0x00020000")
    def issueA(t):
        sl = t % 3
        for i in range(2):
            e.salu(f"s_mov_b32 s36, {(64*t + 32*i)*8192}", w=['s36'])
            e.salu(f"s_add_u32 m0, s35, {WQ0 + sl*WSZ + i*8192}", w=['m0'], r=['s35'])
            e.dma(vWQO, 20, 36, ('A', t))
        for i in range(2):
            e.salu(f"s_mov_b32 s36, {64*i*1152 + 128*t}", w=['s36'])
            e.salu(f"s_add_u32 m0, s35, {XR0 + sl*XSZ + i*8192}", w=['m0'], r=['s35'])
            e.dma(vXO, 8, 36, ('A', t))
        lab = newlab("xs")
        e.salu("s_cmp_ge_u32 s32, 2"); e.salu(f"s_cbranch_scc1 {lab}")
        e.salu(f"s_add_u32 s36, s39, {128*t}", w=['s36'])
        e.salu(f"s_add_u32 m0, s43, {XR0 + sl*XSZ}", w=['m0'], r=['s43'])
        e.ins(f"buffer_load_dwordx4 v{vXO}, s[8:11], s36 offen offset:0 lds", 'dma', [], ['m0'])
        e.raw(f"{lab}:")
        e.vm.append(('Ax', t))
    def waitA(t, branchy=False):
        idx = [i for i, tg in enumerate(e.vm) if tg == ('Ax', t)][-1]
        later = [tg for tg in e.vm[idx + 1:] if tg[0] != 'Ax']
        if branchy:
            la, lb = newlab("wa"), newlab("wb")
            laterA = [tg for tg in later if tg[0] == 'A']
            e.salu("s_cmp_eq_u32 s38, 0"); e.salu(f"s_cbranch_scc1 {la}")
            if STAGGER:
                e.salu("s_cmp_eq_u32 s60, 1"); e.salu(f"s_cbranch_scc1 {la}")
            e.ins(f"s_waitcnt vmcnt({len(later)})", 'wait')
            e.salu(f"s_branch {lb}")
            e.raw(f"{la}:")
            e.ins(f"s_waitcnt vmcnt({len(laterA)})", 'wait')
            e.raw(f"{lb}:")
        else:
            e.ins(f"s_waitcnt vmcnt({len(later)})", 'wait')
        e.vm = e.vm[idx + 1:]
    def dmaItem(i, track=True):
        kind, j = ITEMS[i]
        base = (i % 10) * REG
        srd = 12 if kind == 'K' else 16
        vo = vKO if kind == 'K' else vVO
        for k in range(4):
            e.salu(f"s_mov_b32 s36, {j*16384 + k*4096}", w=['s36'])
            e.salu(f"s_add_u32 m0, s44, {base + k*4096}", w=['m0'], r=['s44'])
            e.dma(vo, srd, 36, (kind, j), nt=True)
            if not track: e.vm.pop()
    def dma_shared(items, only_g0):
        lab = newlab("dl")
        e.salu("s_cmp_eq_u32 s38, 0"); e.salu(f"s_cbranch_scc1 {lab}")
        if only_g0 and STAGGER:
            e.salu("s_cmp_eq_u32 s60, 1"); e.salu(f"s_cbranch_scc1 {lab}")
        for i in items: dmaItem(i)
        e.raw(f"{lab}:")
    def by_group(f0, f1):
        la, lb = newlab("b0"), newlab("b1")
        e.salu("s_cmp_eq_u32 s60, 1"); e.salu(f"s_cbranch_scc1 {la}")
        h = list(e.hist)
        f0()
        e.salu(f"s_branch {lb}")
        e.raw(f"{la}:")
        e.hist = list(h)
        vmsave = list(e.vm); lg = list(e.lgkm)
        f1()
        e.vm = vmsave
        e.raw(f"{lb}:")
        e.hist = list(h)
    def dump(items):
        e.valu("v_lshlrev_b32 v4, 4, v1", w=['v4'], r=['v1'])
        e.valu("v_add_u32 v4, s35, v4", w=['v4'], r=['v4', 's35'])
        for i in items:
            e.valu(f"v_add_u32 v5, {(i % 10) * REG}, v4", w=['v5'], r=['v4'])
            for k in range(2):
                e.ds_write("ds_write_b128", 5, STGREG[i] + 4 * k, 4, k * 8192)
        e.wait_lgkm()
    if STAGGER:
        lab = newlab("de")
        e.salu("s_cmp_eq_u32 s60, 0"); e.salu(f"s_cbranch_scc1 {lab}")
        e.salu("s_cmp_eq_u32 s38, 0"); e.salu(f"s_cbranch_scc1 {lab}")
        for i in range(NEARLY): dmaItem(i, track=False)
        e.raw(f"{lab}:")
    issueA(0); issueA(1); issueA(2)
    e.salu("s_mov_b32 s24, s28"); e.salu("s_and_b32 s25, s29, 0xffff")
    e.salu(f"s_mov_b32 s26, {72*128*1024}"); e.salu("s_mov_b32 s27, 0x00020000")
    e.salu(f"s_mov_b32 s34, {f32bits(CSC):#x}")
    e.salu("s_and_b32 s37, s32, 3", r=['s32'])
    e.salu("s_lshr_b32 s38, s32, 2", r=['s32'])
    PX, PW = 102, 108
    e.valu("v_and_b32 v4, 31, v1", w=['v4'], r=['v1'])
    e.valu("v_lshrrev_b32 v5, 5, v1", w=['v5'], r=['v1'])
    e.salu("s_lshl_b32 s33, s37, 5", w=['s33'])
    e.valu("v_add_u32 v6, s33, v4", w=['v6'], r=['v4', 's33'])
    e.valu("v_bfe_u32 v7, v6, 1, 3", w=['v7'], r=['v6'])
    e.valu("v_xor_b32 v7, v7, v5", w=['v7'], r=['v7', 'v5'])
    e.valu("v_lshlrev_b32 v7, 4, v7", w=['v7'], r=['v7'])
    e.valu("v_lshlrev_b32 v6, 7, v6", w=['v6'], r=['v6'])
    e.valu("v_add_u32 v6, v6, v7", w=['v6'], r=['v6', 'v7'])
    e.valu(f"v_add_u32 v{PX}, {XR0}, v6", w=[R(PX)], r=['v6'])
    for u in range(1, 4):
        e.valu(f"v_xor_b32 v{PX+u}, {u<<5}, v{PX}", w=[R(PX+u)], r=[R(PX)])
    e.valu("v_bfe_u32 v7, v3, 1, 3", w=['v7'], r=['v3'])
    e.valu("v_xor_b32 v7, v7, v2", w=['v7'], r=['v7', 'v2'])
    e.valu("v_lshlrev_b32 v7, 4, v7", w=['v7'], r=['v7'])
    e.valu("v_lshlrev_b32 v6, 7, v3", w=['v6'], r=['v3'])
    e.valu("v_add_u32 v6, v6, v7", w=['v6'], r=['v6', 'v7'])
    e.valu(f"v_add_u32 v{PX+4}, {XR0 + 128*128}, v6", w=[R(PX+4)], r=['v6'])
    e.valu(f"v_xor_b32 v{PX+5}, 64, v{PX+4}", w=[R(PX+5)], r=[R(PX+4)])
    e.valu("v_bfe_u32 v6, v1, 4, 1", w=['v6'], r=['v1'])
    e.valu("v_lshlrev_b32 v6, 1, v6", w=['v6'], r=['v6'])
    e.valu("v_and_b32 v7, 1, v1", w=['v7'], r=['v1'])
    e.valu("v_or_b32 v6, v6, v7", w=['v6'], r=['v6', 'v7'])
    e.valu("v_bfe_u32 v7, v1, 2, 2", w=['v7'], r=['v1'])
    e.valu("v_lshlrev_b32 v8, 2, v7", w=['v8'], r=['v7'])
    e.valu("v_xor_b32 v6, v6, v8", w=['v6'], r=['v6', 'v8'])
    e.valu("v_bfe_u32 v8, v1, 1, 1", w=['v8'], r=['v1'])
    e.valu("v_lshlrev_b32 v8, 3, v8", w=['v8'], r=['v8'])
    e.valu(f"v_lshlrev_b32 v{vT0}, 3, v5", w=[R(vT0)], r=['v5'])
    e.valu(f"v_add_u32 v{vT0}, v{vT0}, v7", w=[R(vT0)], r=[R(vT0), 'v7'])
    e.valu(f"v_lshlrev_b32 v{vT0}, 8, v{vT0}", w=[R(vT0)], r=[R(vT0)])
    e.valu(f"v_lshlrev_b32 v{vT1}, 4, v6", w=[R(vT1)], r=['v6'])
    e.valu(f"v_add3_u32 v{vT0}, v{vT0}, v{vT1}, v8", w=[R(vT0)], r=[R(vT0), R(vT1), 'v8'])
    e.valu(f"v_add_u32 v{vT0}, {WQ0}, v{vT0}", w=[R(vT0)], r=[R(vT0)])
    e.salu("s_lshl_b32 s33, s38, 7", w=['s33'])
    e.valu(f"v_xor_b32 v{PW}, s33, v{vT0}", w=[R(PW)], r=[R(vT0), 's33'])
    e.valu(f"v_xor_b32 v{PW+1}, 64, v{PW}", w=[R(PW+1)], r=[R(PW)])
    e.valu("v_and_b32 v6, 3, v1", w=['v6'], r=['v1'])
    e.salu("s_lshr_b32 s33, s32, 1"); e.salu("s_lshl_b32 s33, s33, 2", w=['s33'])
    e.valu(f"v_add_u32 v{vT0}, s33, v6", w=[R(vT0)], r=['v6', 's33'])
    e.valu("v_lshlrev_b32 v8, 2, v7", w=['v8'], r=['v7'])
    e.valu(f"v_xor_b32 v{vT0}, v{vT0}, v8", w=[R(vT0)], r=[R(vT0), 'v8'])
    e.valu(f"v_lshlrev_b32 v{vT0}, 4, v{vT0}", w=[R(vT0)], r=[R(vT0)])
    e.valu(f"v_lshlrev_b32 v{vT1}, 3, v2", w=[R(vT1)], r=['v2'])
    e.valu(f"v_add_u32 v{vT1}, v{vT1}, v7", w=[R(vT1)], r=[R(vT1), 'v7'])
    e.valu(f"v_lshlrev_b32 v{vT1}, 8, v{vT1}", w=[R(vT1)], r=[R(vT1)])
    e.salu("s_and_b32 s33, s32, 1"); e.salu("s_lshl_b32 s33, s33, 3"); e.salu(f"s_add_u32 s33, s33, {WQ0}", w=['s33'])
    e.valu(f"v_add3_u32 v{PW+2}, v{vT0}, v{vT1}, s33", w=[R(PW+2)], r=[R(vT0), R(vT1), 's33'])
    QACC = 64; QA8 = 96
    def setregs(t):
        base = 128 + (t & 1) * 64
        return base, base + 16, base + 48, base + 56
    def readsA(t):
        sl = t % 3
        XF, WF, X8F, W8F = setregs(t)
        ops = []
        def rd(*a): ops.append(lambda: e.ds_read(*a))
        for u in range(4):
            rd("ds_read_b128", XF + u * 4, 4, PX + u, sl * XSZ, ('fa', t))
            for tt in range(2):
                for part in range(2):
                    rd("ds_read_b64_tr_b16", WF + (u * 2 + tt) * 4 + part * 2, 2, PW + tt,
                       sl * WSZ + (16 * u + 4 * part) * 256, ('fa', t))
        for u2 in range(2):
            rd("ds_read_b128", X8F + u2 * 4, 4, PX + 4 + u2, sl * XSZ, ('fa', t))
            for part in range(2):
                rd("ds_read_b64_tr_b16", W8F + u2 * 4 + part * 2, 2, PW + 2,
                   sl * WSZ + (32 * u2 + 4 * part) * 256, ('fa', t))
        return ops
    waitA(0)
    e.barrier()
    for o in readsA(0): o()
    for t in range(9):
        e.wait_lgkm()
        if t + 1 < 9:
            waitA(t + 1, branchy=(t + 1 >= 7))
        e.barrier()
        stamp(e, 1 + t)
        if t + 3 < 9:
            issueA(t + 3)
        ops = readsA(t + 1) if t + 1 < 9 else []
        XF, WF, X8F, W8F = setregs(t)
        k = 0
        for u in range(4):
            for tt in range(2):
                e.mfma('32', QACC + tt * 16, WF + (u * 2 + tt) * 4, XF + u * 4, cin=(0 if (t == 0 and u == 0) else None))
                for o in ops[k:k + 3]: o()
                k += 3
        for u2 in range(2):
            e.mfma('16', QA8, W8F + u2 * 4, X8F + u2 * 4, cin=(0 if (t == 0 and u2 == 0) else None))
            for o in ops[k:k + 1]: o()
            k += 1
        if t == 5: dma_shared([0], True)
        if t == 6: dma_shared([1], True)
        if t == 7: dma_shared([2], True)
        if t == 8: dma_shared([3], False)
    TQ = 192
    for tt in range(2):
        for ip in range(2):
            for jj in range(4):
                a = QACC + tt * 16 + 8 * ip + 2 * jj
                d = TQ + (2 * tt + ip) * 4 + jj
                e.valu(f"v_cvt_pk_bf16_f32 v{d}, v{a}, v{a+1}", w=[R(d)], r=[R(a), R(a+1)])
    e.valu(f"v_cvt_pk_bf16_f32 v{TQ+16}, v{QA8}, v{QA8+1}", w=[R(TQ+16)], r=[R(QA8), R(QA8+1)])
    e.valu(f"v_cvt_pk_bf16_f32 v{TQ+17}, v{QA8+2}, v{QA8+3}", w=[R(TQ+17)], r=[R(QA8+2), R(QA8+3)])
    e.valu("v_lshlrev_b32 v8, 4, v1", w=['v8'], r=['v1'])
    e.salu("s_lshl_b32 s33, s37, 13"); e.salu(f"s_add_u32 s33, s33, {QX0}", w=['s33'])
    e.valu("v_add_u32 v7, s33, v8", w=['v7'], r=['v8', 's33'])
    e.salu("s_lshl_b32 s33, s38, 12", w=['s33'])
    e.valu("v_add_u32 v4, s33, v7", w=['v4'], r=['v7', 's33'])
    for k in range(4):
        e.ds_write("ds_write_b128", 4, TQ + k * 4, 4, k * 1024)
    e.salu("s_lshr_b32 s33, s32, 1"); e.salu("s_lshl_b32 s33, s33, 10")
    e.salu("s_and_b32 s36, s32, 1"); e.salu("s_lshl_b32 s36, s36, 3"); e.salu("s_add_u32 s33, s33, s36")
    e.salu(f"s_add_u32 s33, s33, {X80}", w=['s33'])
    e.valu("v_add_u32 v5, s33, v8", w=['v5'], r=['v8', 's33'])
    e.ds_write("ds_write_b64", 5, TQ + 16, 2, 0)
    e.salu(f"s_mov_b32 s61, {f32bits(THR):#x}")
    e.wait_lgkm()
    e.barrier()
    stamp(e, 10)
    labAux = newlab("AUX")
    e.salu("s_cmp_eq_u32 s38, 1"); e.salu(f"s_cbranch_scc1 {labAux}")
    vm0 = list(e.vm); h0 = list(e.hist)
    def V_(ops, t, w, r): ops.append(lambda: e.valu(t, w=w, r=r))
    def T_(ops, t, w, r): ops.append(lambda: e.trans(t, w=w, r=r))
    def lazy(ops, M, L, L2, MC, AL, t0, t1, O, nO):
        V_(ops, f"v_max_f32 v{t0}, v{t0}, v{t1}", [R(t0)], [R(t0), R(t1)])
        V_(ops, f"v_sub_f32 v{t1}, v{t0}, v{M}", [R(t1)], [R(M), R(t0)])
        def br():
            lab = newlab("lz")
            e.valu(f"v_cmp_lt_f32 vcc, s61, v{t1}", w=['vcc'], r=[R(t1), 's61'])
            e.nop(5)
            e.salu(f"s_cbranch_vccz {lab}")
            h = list(e.hist)
            e.valu(f"v_max_f32 v{t0}, v{t0}, v{M}", w=[R(t0)], r=[R(t0), R(M)])
            e.valu(f"v_sub_f32 v{t1}, v{M}, v{t0}", w=[R(t1)], r=[R(M), R(t0)])
            e.valu(f"v_mul_f32 v{t1}, s34, v{t1}", w=[R(t1)], r=[R(t1), 's34'])
            e.trans(f"v_exp_f32 v{AL}, v{t1}", w=[R(AL)], r=[R(t1)])
            e.valu(f"v_mov_b32 v{M}, v{t0}", w=[R(M)], r=[R(t0)])
            e.valu(f"v_mul_f32 v{MC}, s34, v{t0}", w=[R(MC)], r=[R(t0), 's34'])
            e.valu(f"v_mul_f32 v{L}, v{L}, v{AL}", w=[R(L)], r=[R(L), R(AL)])
            if L2 is not None:
                e.valu(f"v_mul_f32 v{L2}, v{L2}, v{AL}", w=[R(L2)], r=[R(L2), R(AL)])
            e.nop(12)
            for k in range(nO):
                e.valu(f"v_mul_f32 v{O+k}, v{O+k}, v{AL}", w=[R(O+k)], r=[R(O+k), R(AL)])
            e.nop(2)
            e.raw(f"{lab}:")
            e.hist = h
        ops.append(br)
    def run(mfs, after, fill):
        n = len(mfs); d = 0
        for k in range(n):
            mfs[k]()
            for r_ in after[k]: r_()
            tgt = (len(fill) * (k + 1)) // n
            while d < tgt:
                fill[d](); d += 1
        while d < len(fill):
            fill[d](); d += 1
    e.vm = []
    for s in range(8):
        e.ds_read("ds_read_b128", QF + s * 4, 4, 7, s * 1024, 'q')
    e.valu("v_and_b32 v4, 31, v1", w=['v4'], r=['v1'])
    e.valu("v_lshrrev_b32 v5, 5, v1", w=['v5'], r=['v1'])
    e.valu("v_and_b32 v6, 15, v4", w=['v6'], r=['v4'])
    e.valu("v_xor_b32 v6, v6, v5", w=['v6'], r=['v6', 'v5'])
    e.valu("v_lshlrev_b32 v6, 4, v6", w=['v6'], r=['v6'])
    e.valu("v_lshlrev_b32 v2, 8, v4", w=['v2'], r=['v4'])
    e.valu(f"v_add_u32 v{vKA0}, v6, v2", w=[R(vKA0)], r=['v6', 'v2'])
    e.valu("v_bfe_u32 v6, v1, 4, 1", w=['v6'], r=['v1'])
    e.valu("v_lshlrev_b32 v6, 1, v6", w=['v6'], r=['v6'])
    e.valu("v_and_b32 v2, 1, v1", w=['v2'], r=['v1'])
    e.valu("v_or_b32 v6, v6, v2", w=['v6'], r=['v6', 'v2'])
    e.valu("v_bfe_u32 v2, v1, 2, 2", w=['v2'], r=['v1'])
    e.valu("v_lshlrev_b32 v3, 2, v2", w=['v3'], r=['v2'])
    e.valu("v_xor_b32 v6, v6, v3", w=['v6'], r=['v6', 'v3'])
    e.valu("v_lshlrev_b32 v3, 1, v5", w=['v3'], r=['v5'])
    e.valu("v_xor_b32 v6, v6, v3", w=['v6'], r=['v6', 'v3'])
    e.valu("v_lshlrev_b32 v6, 4, v6", w=['v6'], r=['v6'])
    e.valu("v_lshlrev_b32 v3, 2, v5", w=['v3'], r=['v5'])
    e.valu("v_add_u32 v3, v3, v2", w=['v3'], r=['v3', 'v2'])
    e.valu("v_lshlrev_b32 v3, 8, v3", w=['v3'], r=['v3'])
    e.valu("v_bfe_u32 v2, v1, 1, 1", w=['v2'], r=['v1'])
    e.valu("v_lshlrev_b32 v2, 3, v2", w=['v2'], r=['v2'])
    e.valu(f"v_add3_u32 v{vVA0}, v3, v6, v2", w=[R(vVA0)], r=['v3', 'v6', 'v2'])
    e.wait_lgkm()
    e.barrier()
    stamp(e, 11)
    RS = 6
    def qk_ops(j):
        sb = SB + (j & 1) * 32
        reg = region('K', j)
        pre = []
        V_(pre, f"v_add_u32 v{KA}, {reg}, v{vKA0}", [R(KA)], [R(vKA0)])
        for s in range(1, 8):
            V_(pre, f"v_xor_b32 v{KA+s}, {s<<5}, v{KA}", [R(KA+s)], [R(KA)])
        rds, mfs = [], []
        for k in range(16):
            kt, s = divmod(k, 8)
            rds.append(lambda k=k, kt=kt, s=s: e.ds_read("ds_read_b128", KF + (k % RS) * 4, 4, KA + s, kt * 8192, ('kf', j, k)))
            def mf(k=k, kt=kt, s=s):
                if k % 2 == 0: e.wait_lgkm(('kf', j, k + 1))
                e.mfma('32', sb + kt * 16, KF + (k % RS) * 4, QF + s * 4, cin=(0 if s == 0 else None))
            mfs.append(mf)
        return pre, rds, mfs
    def pv_ops(j):
        reg = region('V', j)
        pre = []
        V_(pre, f"v_add_u32 v{VA}, {reg}, v{vVA0}", [R(VA)], [R(vVA0)])
        for dt in range(1, 4):
            V_(pre, f"v_xor_b32 v{VA+dt}, {dt<<6}, v{VA}", [R(VA+dt)], [R(VA)])
        rds, mfs = [], []
        for k in range(16):
            ks, dt = divmod(k, 4)
            def rd(k=k, ks=ks, dt=dt):
                for part in range(2):
                    e.ds_read("ds_read_b64_tr_b16", VF + (k % RS) * 4 + part * 2, 2, VA + dt, (16 * ks + 8 * part) * 256, ('vf', j, k))
            rds.append(rd)
            def mf(k=k, ks=ks, dt=dt):
                if k % 2 == 0: e.wait_lgkm(('vf', j, k + 1))
                e.mfma('32', OA + dt * 16, VF + (k % RS) * 4, PBr(j, ks), cin=(0 if (j == 0 and ks == 0) else None))
            mfs.append(mf)
        return pre, rds, mfs
    def sm_ops(j):
        sb = SB + (j & 1) * 32
        ops = []
        for half, tt in ((0, vT0), (1, vT1)):
            pass
        A0, A1 = [], []
        for half, tt, L_ in ((0, vT0, A0), (1, vT1, A1)):
            b = sb + 16 * half
            V_(L_, f"v_max3_f32 v{tt}, v{b}, v{b+1}, v{b+2}", [R(tt)], [R(b), R(b+1), R(b+2)])
            for k in range(3, 15, 2):
                V_(L_, f"v_max3_f32 v{tt}, v{tt}, v{b+k}, v{b+k+1}", [R(tt)], [R(tt), R(b+k), R(b+k+1)])
            V_(L_, f"v_max_f32 v{tt}, v{tt}, v{b+15}", [R(tt)], [R(tt), R(b+15)])
        for x, y in zip(A0, A1): ops += [x, y]
        V_(ops, f"v_max_f32 v{vT0}, v{vT0}, v{vT1}", [R(vT0)], [R(vT0), R(vT1)])
        V_(ops, f"v_mov_b32 v{vT1}, v{vT0}", [R(vT1)], [R(vT0)])
        ops.append(lambda: e.ins(f"v_permlane32_swap_b32 v{vT0}, v{vT1}", 'perm', w=[R(vT0), R(vT1)], r=[R(vT0), R(vT1)]))
        if j == 0:
            V_(ops, f"v_max_f32 v{vM}, v{vT0}, v{vT1}", [R(vM)], [R(vT0), R(vT1)])
            V_(ops, f"v_mul_f32 v{vMC}, s34, v{vM}", [R(vMC)], [R(vM), 's34'])
        else:
            lazy(ops, vM, vL, vL2, vMC, vAL, vT0, vT1, OA, 64)
        def expk(ops, ks):
            b = PBr(j, ks)
            for jj in range(8):
                V_(ops, f"v_fma_f32 v{b+jj}, v{b+jj}, s34, -v{vMC}", [R(b+jj)], [R(b+jj), 's34', R(vMC)])
            for jj in range(8):
                T_(ops, f"v_exp_f32 v{b+jj}, v{b+jj}", [R(b+jj)], [R(b+jj)])
            for jj in range(0, 8, 2):
                if j == 0 and ks == 0 and jj == 0:
                    V_(ops, f"v_mov_b32 v{vL}, v{b}", [R(vL)], [R(b)])
                    V_(ops, f"v_mov_b32 v{vL2}, v{b+1}", [R(vL2)], [R(b+1)])
                else:
                    V_(ops, f"v_add_f32 v{vL}, v{vL}, v{b+jj}", [R(vL)], [R(vL), R(b+jj)])
                    V_(ops, f"v_add_f32 v{vL2}, v{vL2}, v{b+jj+1}", [R(vL2)], [R(vL2), R(b+jj+1)])
            for jj in range(0, 8, 2):
                V_(ops, f"v_cvt_pk_bf16_f32 v{b+jj//2}, v{b+jj}, v{b+jj+1}", [R(b+jj//2)], [R(b+jj), R(b+jj+1)])
        expk(ops, 0); expk(ops, 1)
        B = []
        expk(B, 2); expk(B, 3)
        return ops, B
    kpre, krd, kmf = qk_ops(0)
    for o in kpre: o()
    for o in krd[:RS]: o()
    run(kmf, [[krd[k + RS]] if k + RS < 16 else [] for k in range(16)], [])
    for j in range(8):
        e.wait_lgkm()
        e.barrier()
        stamp(e, 12 + j)
        vpre, vrd, vmf = pv_ops(j)
        A, B = sm_ops(j)
        if j < 7:
            kpre, krd, kmf = qk_ops(j + 1)
            for o in kpre: o()
            for o in krd[:RS]: o()
            for o in vpre: o()
            after = [[krd[k + RS]] if k + RS < 16 else [vrd[k + RS - 16]] for k in range(16)]
            run(kmf, after, A)
        else:
            for o in vpre: o()
            for o in vrd[:RS]: o()
            for o in A: o()
        nB = len(B); d = 0
        for k in range(16):
            vmf[k]()
            if k + RS < 16: vrd[k + RS]()
            if k < 8:
                tgt = (nB * (k + 1)) // 7 if k < 7 else nB
                while d < min(tgt, nB):
                    B[d](); d += 1
    e.barrier()
    stamp(e, 20)
    e.valu(f"v_add_f32 v{vL}, v{vL}, v{vL2}", w=[R(vL)], r=[R(vL), R(vL2)])
    e.valu(f"v_mov_b32 v{vT0}, v{vL}", w=[R(vT0)], r=[R(vL)])
    e.ins(f"v_permlane32_swap_b32 v{vT0}, v{vL}", 'perm', w=[R(vT0), R(vL)], r=[R(vT0), R(vL)])
    e.valu(f"v_add_f32 v{vL}, v{vL}, v{vT0}", w=[R(vL)], r=[R(vL), R(vT0)])
    e.trans(f"v_rcp_f32 v{vAL}, v{vL}", w=[R(vAL)], r=[R(vL)])
    e.valu("v_bfe_u32 v2, v1, 4, 1", w=['v2'], r=['v1'])
    e.valu("v_lshlrev_b32 v2, 13, v2", w=['v2'], r=['v2'])
    e.valu("v_lshrrev_b32 v3, 5, v1", w=['v3'], r=['v1'])
    e.valu("v_lshlrev_b32 v3, 4, v3", w=['v3'], r=['v3'])
    e.valu("v_and_b32 v4, 15, v1", w=['v4'], r=['v1'])
    e.valu("v_add3_u32 v2, v2, v3, v4", w=['v2'], r=['v2', 'v3', 'v4'])
    e.valu("v_lshlrev_b32 v2, 4, v2", w=['v2'], r=['v2'])
    e.salu("s_mul_i32 s33, s31, 9"); e.salu("s_lshl_b32 s36, s37, 1"); e.salu("s_add_u32 s33, s33, s36")
    e.salu("s_lshl_b32 s33, s33, 7"); e.salu("s_lshl_b32 s36, s30, 2"); e.salu("s_add_u32 s33, s33, s36")
    e.salu("s_lshl_b32 s33, s33, 10", w=['s33'])
    for dt in range(4):
        for ip in range(2):
            b = OA + dt * 16 + ip * 8
            d = SB + (dt * 2 + ip) * 4
            for jj in range(8):
                e.valu(f"v_mul_f32 v{b+jj}, v{b+jj}, v{vAL}", w=[R(b+jj)], r=[R(b+jj), R(vAL)])
            for jj in range(4):
                e.valu(f"v_cvt_pk_bf16_f32 v{d+jj}, v{b+2*jj}, v{b+2*jj+1}", w=[R(d+jj)], r=[R(b+2*jj), R(b+2*jj+1)])
            e.bstore(d, 4, 2, 24, 33, dt * 1024 + ip * 512)
    if STAMP: e.wait_vm()
    stamp(e, 21); stamp(e, 22)
    stamp_out(e, 23)
    e.raw("    s_endpgm")
    e.raw(f"{labAux}:")
    e.vm = list(vm0); e.hist = list(h0); e.lgkm = []
    aKA, aVA, aKA0, aVA0 = 10, 14, 28, 29
    e.valu(f"v_add_u32 v5, {X80}, v8", w=['v5'], r=['v8'])
    for s in range(4):
        e.ds_read("ds_read_b128", Q8 + s * 4, 4, 5, s * 1024, 'q')
    e.valu("v_lshrrev_b32 v2, 4, v1", w=['v2'], r=['v1'])
    e.valu("v_and_b32 v3, 15, v1", w=['v3'], r=['v1'])
    e.valu("v_bfe_u32 v4, v1, 2, 2", w=['v4'], r=['v1'])
    e.valu("v_and_b32 v5, 3, v1", w=['v5'], r=['v1'])
    e.salu("s_lshl_b32 s33, s37, 4", w=['s33'])
    e.valu("v_add_u32 v6, s33, v3", w=['v6'], r=['v3', 's33'])
    e.valu("v_lshlrev_b32 v6, 8, v6", w=['v6'], r=['v6'])
    e.valu("v_xor_b32 v7, v2, v3", w=['v7'], r=['v2', 'v3'])
    e.valu("v_lshlrev_b32 v7, 4, v7", w=['v7'], r=['v7'])
    e.valu(f"v_add_u32 v{aKA0}, v6, v7", w=[R(aKA0)], r=['v6', 'v7'])
    e.valu("v_lshlrev_b32 v6, 2, v2", w=['v6'], r=['v2'])
    e.valu("v_add3_u32 v6, v6, v4, s33", w=['v6'], r=['v6', 'v4', 's33'])
    e.valu("v_lshlrev_b32 v6, 8, v6", w=['v6'], r=['v6'])
    e.valu("v_lshlrev_b32 v7, 2, v4", w=['v7'], r=['v4'])
    e.valu("v_xor_b32 v7, v7, v5", w=['v7'], r=['v7', 'v5'])
    e.valu("v_and_b32 v9, 1, v2", w=['v9'], r=['v2'])
    e.valu("v_lshlrev_b32 v9, 1, v9", w=['v9'], r=['v9'])
    e.valu("v_xor_b32 v7, v7, v9", w=['v7'], r=['v7', 'v9'])
    e.valu("v_lshlrev_b32 v7, 4, v7", w=['v7'], r=['v7'])
    e.valu(f"v_add_u32 v{aVA0}, v6, v7", w=[R(aVA0)], r=['v6', 'v7'])
    e.wait_lgkm()
    e.wait_vm(('K', 0))
    e.barrier()
    stamp(e, 11)
    dmaItem(4); dmaItem(5)
    def qk8(j):
        reg = region('K', j)
        e.valu(f"v_add_u32 v{aKA}, {reg}, v{aKA0}", w=[R(aKA)], r=[R(aKA0)])
        for s in range(1, 4):
            e.valu(f"v_xor_b32 v{aKA+s}, {s<<6}, v{aKA}", w=[R(aKA+s)], r=[R(aKA)])
        for s in range(4):
            e.ds_read("ds_read_b128", K8F + s * 4, 4, aKA + s, 0, ('k8', s))
        for s in range(4):
            e.wait_lgkm(('k8', s))
            e.mfma('16', S8, K8F + s * 4, Q8 + s * 4, cin=(0 if s == 0 else None))
        ops = []
        V_(ops, f"v_max3_f32 v{vT0}, v{S8}, v{S8+1}, v{S8+2}", [R(vT0)], vs(S8, 3))
        V_(ops, f"v_max_f32 v{vT0}, v{vT0}, v{S8+3}", [R(vT0)], [R(vT0), R(S8+3)])
        V_(ops, f"v_mov_b32 v{vT1}, v{vT0}", [R(vT1)], [R(vT0)])
        ops.append(lambda: e.ins(f"v_permlane16_swap_b32 v{vT0}, v{vT1}", 'perm', w=[R(vT0), R(vT1)], r=[R(vT0), R(vT1)]))
        V_(ops, f"v_max_f32 v{vT0}, v{vT0}, v{vT1}", [R(vT0)], [R(vT0), R(vT1)])
        V_(ops, f"v_mov_b32 v{vT1}, v{vT0}", [R(vT1)], [R(vT0)])
        ops.append(lambda: e.ins(f"v_permlane32_swap_b32 v{vT0}, v{vT1}", 'perm', w=[R(vT0), R(vT1)], r=[R(vT0), R(vT1)]))
        if j == 0:
            V_(ops, f"v_max_f32 v{vM}, v{vT0}, v{vT1}", [R(vM)], [R(vT0), R(vT1)])
            V_(ops, f"v_mul_f32 v{vMC}, s34, v{vM}", [R(vMC)], [R(vM), 's34'])
        else:
            lazy(ops, vM, vL, None, vMC, vAL, vT0, vT1, O8, 32)
        for k in range(4):
            V_(ops, f"v_fma_f32 v{S8+k}, v{S8+k}, s34, -v{vMC}", [R(S8+k)], [R(S8+k), 's34', R(vMC)])
        for k in range(4):
            T_(ops, f"v_exp_f32 v{S8+k}, v{S8+k}", [R(S8+k)], [R(S8+k)])
        for k in range(4):
            if j == 0 and k == 0:
                V_(ops, f"v_mov_b32 v{vL}, v{S8}", [R(vL)], [R(S8)])
            else:
                V_(ops, f"v_add_f32 v{vL}, v{vL}, v{S8+k}", [R(vL)], [R(vL), R(S8+k)])
        V_(ops, f"v_cvt_pk_bf16_f32 v{P8}, v{S8}, v{S8+1}", [R(P8)], [R(S8), R(S8+1)])
        V_(ops, f"v_cvt_pk_bf16_f32 v{P8+1}, v{S8+2}, v{S8+3}", [R(P8+1)], [R(S8+2), R(S8+3)])
        for o in ops: o()
    def pv8(j):
        reg = region('V', j)
        e.valu(f"v_add_u32 v{aVA}, {reg}, v{aVA0}", w=[R(aVA)], r=[R(aVA0)])
        for u in range(1, 4):
            e.valu(f"v_xor_b32 v{aVA+u}, {u<<6}, v{aVA}", w=[R(aVA+u)], r=[R(aVA)])
        for u in range(4):
            for tt in range(2):
                e.ds_read("ds_read_b64_tr_b16", V8F + (u * 2 + tt) * 2, 2, aVA + u, 8 * tt, ('v8', u, tt))
        for u in range(4):
            for tt in range(2):
                e.wait_lgkm(('v8', u, tt))
                e.mfma('16h', O8 + (u * 2 + tt) * 4, V8F + (u * 2 + tt) * 2, P8, cin=(0 if j == 0 else None))
    qk8(0)
    dmaItem(6)
    for j in range(8):
        e.wait_lgkm()
        if j < 7: e.wait_vm(('K', j + 1))
        e.wait_vm(('V', j))
        if j == 7: e.wait_vm('wo')
        e.barrier()
        stamp(e, 12 + j)
        if 2 * j + 7 < 16: dmaItem(2 * j + 7)
        pv8(j)
        if j < 7: qk8(j + 1)
        if 2 * j + 8 < 16: dmaItem(2 * j + 8)
        if j == 5:
            e.salu("s_mul_i32 s33, s2, 18432")
            e.salu("s_add_u32 s56, s56, s33"); e.salu("s_addc_u32 s57, s57, 0"); e.salu("s_and_b32 s57, s57, 0xffff")
            e.salu("s_mov_b32 s58, 18432"); e.salu("s_mov_b32 s59, 0x00020000")
            e.salu("s_mul_i32 s33, s37, 5120", w=['s33'])
            for i in range(5):
                e.salu(f"s_add_u32 s36, s33, {i*1024}", w=['s36'])
                e.salu(f"s_add_u32 m0, s33, {6*REG + i*1024}", w=['m0'])
                e.dma(8, 56, 36, 'wo')
    e.valu(f"v_mov_b32 v{vT1}, v{vL}", w=[R(vT1)], r=[R(vL)])
    e.ins(f"v_permlane16_swap_b32 v{vL}, v{vT1}", 'perm', w=[R(vL), R(vT1)], r=[R(vL), R(vT1)])
    e.valu(f"v_add_f32 v{vL}, v{vL}, v{vT1}", w=[R(vL)], r=[R(vL), R(vT1)])
    e.valu(f"v_mov_b32 v{vT1}, v{vL}", w=[R(vT1)], r=[R(vL)])
    e.ins(f"v_permlane32_swap_b32 v{vL}, v{vT1}", 'perm', w=[R(vL), R(vT1)], r=[R(vL), R(vT1)])
    e.valu(f"v_add_f32 v{vL}, v{vL}, v{vT1}", w=[R(vL)], r=[R(vL), R(vT1)])
    OX = 8 * REG; MX = 0
    e.salu("s_lshl_b32 s33, s37, 13", w=['s33'])
    e.valu(f"v_add_u32 v2, {OX}, v8", w=['v2'], r=['v8'])
    e.valu("v_add_u32 v3, s33, v2", w=['v3'], r=['v2', 's33'])
    for T in range(8):
        e.ds_write("ds_write_b128", 3, O8 + T * 4, 4, T * 1024)
    e.valu("v_lshrrev_b32 v4, 1, v8", w=['v4'], r=['v8'])
    e.salu("s_lshl_b32 s33, s37, 9", w=['s33'])
    e.valu("v_add_u32 v5, s33, v4", w=['v5'], r=['v4', 's33'])
    e.ds_write("ds_write_b64", 5, vM, 2, MX)
    e.wait_lgkm()
    e.barrier()
    stamp(e, 20)
    ML = 128; OP = 136
    for a2 in range(4):
        e.ds_read("ds_read_b64", ML + a2 * 2, 2, 4, MX + a2 * 512, 'ml')
    e.salu("s_lshl_b32 s33, s37, 11", w=['s33'])
    e.valu("v_add_u32 v3, s33, v2", w=['v3'], r=['v2', 's33'])
    for a2 in range(4):
        for tt in range(2):
            e.ds_read("ds_read_b128", OP + (a2 * 2 + tt) * 4, 4, 3, a2 * 8192 + tt * 1024, 'op')
    e.wait_lgkm('ml')
    e.valu(f"v_max3_f32 v{vM}, v{ML}, v{ML+2}, v{ML+4}", w=[R(vM)], r=[R(ML), R(ML+2), R(ML+4)])
    e.valu(f"v_max_f32 v{vM}, v{vM}, v{ML+6}", w=[R(vM)], r=[R(vM), R(ML+6)])
    for a2 in range(4):
        e.valu(f"v_sub_f32 v{ML+2*a2}, v{ML+2*a2}, v{vM}", w=[R(ML+2*a2)], r=[R(ML+2*a2), R(vM)])
        e.valu(f"v_mul_f32 v{ML+2*a2}, s34, v{ML+2*a2}", w=[R(ML+2*a2)], r=[R(ML+2*a2), 's34'])
    for a2 in range(4):
        e.trans(f"v_exp_f32 v{ML+2*a2}, v{ML+2*a2}", w=[R(ML+2*a2)], r=[R(ML+2*a2)])
    e.valu(f"v_mul_f32 v{vL}, v{ML}, v{ML+1}", w=[R(vL)], r=[R(ML), R(ML+1)])
    for a2 in range(1, 4):
        e.valu(f"v_fma_f32 v{vL}, v{ML+2*a2}, v{ML+2*a2+1}, v{vL}", w=[R(vL)], r=[R(ML+2*a2), R(ML+2*a2+1), R(vL)])
    e.trans(f"v_rcp_f32 v{vAL}, v{vL}", w=[R(vAL)], r=[R(vL)])
    for a2 in range(4):
        e.valu(f"v_mul_f32 v{ML+2*a2}, v{ML+2*a2}, v{vAL}", w=[R(ML+2*a2)], r=[R(ML+2*a2), R(vAL)])
    e.wait_lgkm('op')
    for k in range(8):
        e.valu(f"v_mul_f32 v{OP+k}, v{OP+k}, v{ML}", w=[R(OP+k)], r=[R(OP+k), R(ML)])
        for a2 in range(1, 4):
            e.valu(f"v_fma_f32 v{OP+k}, v{OP+a2*8+k}, v{ML+2*a2}, v{OP+k}", w=[R(OP+k)], r=[R(OP+a2*8+k), R(ML+2*a2), R(OP+k)])
    for jj in range(4):
        e.valu(f"v_cvt_pk_bf16_f32 v{Q8+jj}, v{OP+2*jj}, v{OP+2*jj+1}", w=[R(Q8+jj)], r=[R(OP+2*jj), R(OP+2*jj+1)])
    e.salu("s_mul_i32 s33, s31, 9"); e.salu("s_add_u32 s33, s33, 8"); e.salu("s_lshl_b32 s33, s33, 7")
    e.salu("s_lshl_b32 s36, s30, 2"); e.salu("s_add_u32 s33, s33, s36"); e.salu("s_add_u32 s33, s33, s37")
    e.salu("s_lshl_b32 s33, s33, 10", w=['s33'])
    e.bstore(Q8, 4, 8, 24, 33, 0)
    if STAMP: e.wait_vm()
    stamp(e, 21); stamp(e, 22)
    stamp_out(e, 23)
    e.raw(f"{name}_done:")
    e.raw("    s_endpgm")
    return e.text(), 256
```

```python
from em import *
from k2f import WOF0, WOFSZ
import math, struct
CSC = 128 ** -0.5 * math.log2(math.e)
def f32bits(x): return struct.unpack('<I', struct.pack('<f', x))[0]

REG = 16384
XR0 = 49152; XSZ = 18432
WQ0 = 114688; WSZ = 16384
QX0 = 131072
X80 = 114688
STGREG = {3: 32, 4: 40, 5: 48, 6: 56, 7: 112, 8: 120}
NEARLY = 3
THR = 8.0 / CSC
ITEMS = [('K', 0), ('K', 1), ('V', 0), ('K', 2), ('V', 1), ('K', 3), ('V', 2), ('K', 4), ('V', 3), ('K', 5),
         ('V', 4), ('K', 6), ('V', 5), ('K', 7), ('V', 6), ('V', 7)]
def region(kind, j): return (ITEMS.index((kind, j)) % 10) * REG
STAMP = False
STAGGER = False
STGV = False
PRIO = False
def stamp(e, idx):
    if not STAMP: return
    e.ins("s_memtime s[40:41]", 'salu', w=['s40', 's41'])
    e.ins("s_waitcnt lgkmcnt(0)", 'wait'); e.lgkm = []
    e.salu(f"s_mov_b32 s{64+idx}, s40", w=[f's{64+idx}'])
def stamp_out(e, n):
    if not STAMP: return
    e.salu("s_mov_b32 s44, s28"); e.salu("s_and_b32 s45, s29, 0xffff"); e.salu("s_mov_b32 s46, 0x8000000"); e.salu("s_mov_b32 s47, 0x00020000")
    e.salu("s_lshl_b32 s42, s2, 3"); e.salu("s_add_u32 s42, s42, s32")
    e.salu("s_lshl_b32 s42, s42, 7"); e.salu("s_add_u32 s42, s42, 0x4000000", w=['s42'])
    e.valu("v_mov_b32 v3, 0", w=['v3'])
    for i in range(n):
        e.valu(f"v_mov_b32 v4, s{64+i}", w=['v4'], r=[f's{64+i}'])
        e.bstore(4, 1, 3, 44, 42, 4 * i)
        e.ins("s_waitcnt vmcnt(0)", 'wait'); e.vm = []

R = lambda x: f'v{x}'
KA, VA = 10, 18
vM, vL, vMC, vAL, vT0, vT1, vL2 = 22, 23, 24, 25, 26, 27, 9
vKA0, vVA0, vKO, vVO = 28, 29, 30, 31
QF, OA, SB, KF, VF = 32, 64, 128, 192, 216
Q8, O8, S8, P8, K8F, V8F = 32, 64, 96, 100, 104, 120
vXO, vWQO = 100, 101
def PBr(j, ks): return SB + (j & 1) * 32 + (ks >> 1) * 16 + (ks & 1) * 8

def gen_k1(name):
    e = Em()
    nlab = [0]
    def newlab(tag):
        nlab[0] += 1
        return f"{name}_{tag}{nlab[0]}"
    e.raw(f".globl {name}\n.p2align 8\n.type {name},@function\n{name}:")
    e.salu("s_cmp_ge_u32 s2, 256", r=['s2'])
    e.salu(f"s_cbranch_scc1 {name}_done")
    e.salu("s_load_dwordx4 s[4:7], s[0:1], 0", w=ss(4, 4))
    e.salu("s_load_dwordx4 s[24:27], s[0:1], 16", w=ss(24, 4))
    e.salu("s_load_dwordx2 s[28:29], s[0:1], 56", w=ss(28, 2))
    e.salu("s_load_dwordx2 s[56:57], s[0:1], 32", w=ss(56, 2))
    e.salu("s_and_b32 s30, s2, 7"); e.salu("s_lshl_b32 s30, s30, 2")
    e.salu("s_lshr_b32 s31, s2, 3"); e.salu("s_and_b32 s31, s31, 3")
    e.salu("s_add_u32 s30, s30, s31")
    e.salu("s_lshr_b32 s31, s2, 5")
    e.salu("s_and_b32 s60, s31, 1")
    e.valu("v_and_b32 v1, 63, v0", w=['v1'], r=['v0'])
    e.valu("v_lshrrev_b32 v2, 6, v0", w=['v2'], r=['v0'])
    e.ins("v_readfirstlane_b32 s32, v2", 'rfl', w=['s32'], r=['v2'])
    e.valu("v_lshrrev_b32 v2, 4, v1", w=['v2'], r=['v1'])
    e.valu("v_and_b32 v3, 15, v1", w=['v3'], r=['v1'])
    e.salu("s_lshl_b32 s35, s32, 10", w=['s35'], r=['s32'])
    e.salu("s_lshl_b32 s33, s32, 2", w=['s33'])
    e.valu("v_add_u32 v4, s33, v2", w=['v4'], r=['v2', 's33'])
    e.salu("s_and_b32 s33, s32, 3"); e.salu("s_lshl_b32 s33, s33, 2", w=['s33'])
    e.valu("v_add_u32 v7, s33, v2", w=['v7'], r=['v2', 's33'])
    e.valu("v_xor_b32 v5, v7, v3", w=['v5'], r=['v7', 'v3'])
    e.valu("v_lshlrev_b32 v5, 4, v5", w=['v5'], r=['v5'])
    e.valu("v_lshlrev_b32 v6, 8, v7", w=['v6'], r=['v7'])
    e.valu(f"v_add_u32 v{vKO}, v6, v5", w=[R(vKO)], r=['v6', 'v5'])
    e.salu("s_and_b32 s33, s32, 1"); e.salu("s_lshl_b32 s33, s33, 1", w=['s33'])
    e.valu("v_lshlrev_b32 v5, 2, v2", w=['v5'], r=['v2'])
    e.valu("v_or_b32 v5, s33, v5", w=['v5'], r=['v5', 's33'])
    e.valu("v_xor_b32 v5, v5, v3", w=['v5'], r=['v5', 'v3'])
    e.valu("v_lshlrev_b32 v5, 4, v5", w=['v5'], r=['v5'])
    e.valu(f"v_add_u32 v{vVO}, v6, v5", w=[R(vVO)], r=['v6', 'v5'])
    e.salu("s_and_b32 s44, s32, 3"); e.salu("s_lshl_b32 s44, s44, 10", w=['s44'])
    e.salu("s_lshr_b32 s38, s32, 2", w=['s38'])
    e.valu("v_lshlrev_b32 v5, 2, v2", w=['v5'], r=['v2'])
    e.valu("v_xor_b32 v5, v5, v3", w=['v5'], r=['v5', 'v3'])
    e.valu("v_lshlrev_b32 v5, 4, v5", w=['v5'], r=['v5'])
    e.valu("v_lshlrev_b32 v6, 13, v4", w=['v6'], r=['v4'])
    e.valu(f"v_add_u32 v{vWQO}, v6, v5", w=[R(vWQO)], r=['v6', 'v5'])
    e.salu("s_and_b32 s33, s32, 1"); e.salu("s_lshl_b32 s33, s33, 2", w=['s33'])
    e.valu("v_or_b32 v5, s33, v2", w=['v5'], r=['v2', 's33'])
    e.valu("v_and_b32 v6, 7, v1", w=['v6'], r=['v1'])
    e.valu("v_xor_b32 v5, v5, v6", w=['v5'], r=['v5', 'v6'])
    e.valu("v_lshlrev_b32 v5, 4, v5", w=['v5'], r=['v5'])
    e.valu("v_lshrrev_b32 v6, 3, v1", w=['v6'], r=['v1'])
    e.salu("s_lshl_b32 s33, s32, 3", w=['s33'])
    e.valu("v_add_u32 v6, s33, v6", w=['v6'], r=['v6', 's33'])
    e.valu("v_mul_u32_u24 v6, 1152, v6", w=['v6'], r=['v6'])
    e.valu(f"v_add_u32 v{vXO}, v6, v5", w=[R(vXO)], r=['v6', 'v5'])
    e.salu("s_and_b32 s33, s32, 1"); e.salu("s_lshl_b32 s39, s33, 3"); e.salu("s_add_u32 s39, s39, 128")
    e.salu("s_lshl_b32 s43, s32, 3"); e.salu("s_sub_u32 s39, s39, s43"); e.salu("s_mul_i32 s39, s39, 1152")
    e.salu("s_add_u32 s43, s33, 16"); e.salu("s_lshl_b32 s43, s43, 10", w=['s43'])
    e.ins("s_waitcnt lgkmcnt(0)", 'wait')
    stamp(e, 0)
    e.salu("s_mul_i32 s33, s31, 165888")
    e.salu("s_add_u32 s8, s4, s33"); e.salu("s_addc_u32 s9, s5, 0"); e.salu("s_and_b32 s9, s9, 0xffff")
    e.salu("s_mov_b32 s10, 165888"); e.salu("s_mov_b32 s11, 0x00020000")
    e.salu("s_lshl_b32 s33, s31, 5"); e.salu("s_add_u32 s33, s33, s30"); e.salu("s_lshl_b32 s33, s33, 17")
    e.salu("s_add_u32 s12, s6, s33"); e.salu("s_addc_u32 s13, s7, 0"); e.salu("s_and_b32 s13, s13, 0xffff")
    e.salu("s_mov_b32 s14, 131072"); e.salu("s_mov_b32 s15, 0x00020000")
    e.salu("s_add_u32 s16, s24, s33"); e.salu("s_addc_u32 s17, s25, 0"); e.salu("s_and_b32 s17, s17, 0xffff")
    e.salu("s_mov_b32 s18, 131072"); e.salu("s_mov_b32 s19, 0x00020000")
    e.salu("s_lshl_b32 s33, s30, 8")
    e.salu("s_add_u32 s20, s26, s33"); e.salu("s_addc_u32 s21, s27, 0"); e.salu("s_and_b32 s21, s21, 0xffff")
    e.salu(f"s_sub_u32 s22, {576*8192}, s33"); e.salu("s_mov_b32 s23, 0x00020000")
    def issueA(t):
        sl = t % 3
        for i in range(2):
            e.salu(f"s_mov_b32 s36, {(64*t + 32*i)*8192}", w=['s36'])
            e.salu(f"s_add_u32 m0, s35, {WQ0 + sl*WSZ + i*8192}", w=['m0'], r=['s35'])
            e.dma(vWQO, 20, 36, ('A', t))
        for i in range(2):
            e.salu(f"s_mov_b32 s36, {64*i*1152 + 128*t}", w=['s36'])
            e.salu(f"s_add_u32 m0, s35, {XR0 + sl*XSZ + i*8192}", w=['m0'], r=['s35'])
            e.dma(vXO, 8, 36, ('A', t))
        lab = newlab("xs")
        e.salu("s_cmp_ge_u32 s32, 2"); e.salu(f"s_cbranch_scc1 {lab}")
        e.salu(f"s_add_u32 s36, s39, {128*t}", w=['s36'])
        e.salu(f"s_add_u32 m0, s43, {XR0 + sl*XSZ}", w=['m0'], r=['s43'])
        e.ins(f"buffer_load_dwordx4 v{vXO}, s[8:11], s36 offen offset:0 lds", 'dma', [], ['m0'])
        e.raw(f"{lab}:")
        e.vm.append(('Ax', t))
    def waitA(t, branchy=False):
        idx = [i for i, tg in enumerate(e.vm) if tg == ('Ax', t)][-1]
        later = [tg for tg in e.vm[idx + 1:] if tg[0] != 'Ax']
        if branchy:
            la, lb = newlab("wa"), newlab("wb")
            laterA = [tg for tg in later if tg[0] == 'A']
            e.salu("s_cmp_eq_u32 s38, 0"); e.salu(f"s_cbranch_scc1 {la}")
            if STAGGER:
                e.salu("s_cmp_eq_u32 s60, 1"); e.salu(f"s_cbranch_scc1 {la}")
            e.ins(f"s_waitcnt vmcnt({len(later)})", 'wait')
            e.salu(f"s_branch {lb}")
            e.raw(f"{la}:")
            e.ins(f"s_waitcnt vmcnt({len(laterA)})", 'wait')
            e.raw(f"{lb}:")
        else:
            e.ins(f"s_waitcnt vmcnt({len(later)})", 'wait')
        e.vm = e.vm[idx + 1:]
    def dmaItem(i, track=True):
        kind, j = ITEMS[i]
        base = (i % 10) * REG
        srd = 12 if kind == 'K' else 16
        vo = vKO if kind == 'K' else vVO
        for k in range(4):
            e.salu(f"s_mov_b32 s36, {j*16384 + k*4096}", w=['s36'])
            e.salu(f"s_add_u32 m0, s44, {base + k*4096}", w=['m0'], r=['s44'])
            e.dma(vo, srd, 36, (kind, j), nt=True)
            if not track: e.vm.pop()
    def dma_shared(items, only_g0):
        lab = newlab("dl")
        e.salu("s_cmp_eq_u32 s38, 0"); e.salu(f"s_cbranch_scc1 {lab}")
        if only_g0 and STAGGER:
            e.salu("s_cmp_eq_u32 s60, 1"); e.salu(f"s_cbranch_scc1 {lab}")
        for i in items: dmaItem(i)
        e.raw(f"{lab}:")
    def by_group(f0, f1):
        la, lb = newlab("b0"), newlab("b1")
        e.salu("s_cmp_eq_u32 s60, 1"); e.salu(f"s_cbranch_scc1 {la}")
        h = list(e.hist)
        f0()
        e.salu(f"s_branch {lb}")
        e.raw(f"{la}:")
        e.hist = list(h)
        vmsave = list(e.vm); lg = list(e.lgkm)
        f1()
        e.vm = vmsave
        e.raw(f"{lb}:")
        e.hist = list(h)
    def dump(items):
        e.valu("v_lshlrev_b32 v4, 4, v1", w=['v4'], r=['v1'])
        e.valu("v_add_u32 v4, s35, v4", w=['v4'], r=['v4', 's35'])
        for i in items:
            e.valu(f"v_add_u32 v5, {(i % 10) * REG}, v4", w=['v5'], r=['v4'])
            for k in range(2):
                e.ds_write("ds_write_b128", 5, STGREG[i] + 4 * k, 4, k * 8192)
        e.wait_lgkm()
    if STAGGER:
        lab = newlab("de")
        e.salu("s_cmp_eq_u32 s60, 0"); e.salu(f"s_cbranch_scc1 {lab}")
        e.salu("s_cmp_eq_u32 s38, 0"); e.salu(f"s_cbranch_scc1 {lab}")
        for i in range(NEARLY): dmaItem(i, track=False)
        e.raw(f"{lab}:")
    issueA(0); issueA(1); issueA(2)
    e.salu("s_mov_b32 s24, s28"); e.salu("s_and_b32 s25, s29, 0xffff")
    e.salu(f"s_mov_b32 s26, {72*128*1024}"); e.salu("s_mov_b32 s27, 0x00020000")
    e.salu(f"s_mov_b32 s34, {f32bits(CSC):#x}")
    e.salu("s_and_b32 s37, s32, 3", r=['s32'])
    e.salu("s_lshr_b32 s38, s32, 2", r=['s32'])
    PX, PW = 102, 108
    e.valu("v_and_b32 v4, 31, v1", w=['v4'], r=['v1'])
    e.valu("v_lshrrev_b32 v5, 5, v1", w=['v5'], r=['v1'])
    e.salu("s_lshl_b32 s33, s37, 5", w=['s33'])
    e.valu("v_add_u32 v6, s33, v4", w=['v6'], r=['v4', 's33'])
    e.valu("v_bfe_u32 v7, v6, 1, 3", w=['v7'], r=['v6'])
    e.valu("v_xor_b32 v7, v7, v5", w=['v7'], r=['v7', 'v5'])
    e.valu("v_lshlrev_b32 v7, 4, v7", w=['v7'], r=['v7'])
    e.valu("v_lshlrev_b32 v6, 7, v6", w=['v6'], r=['v6'])
    e.valu("v_add_u32 v6, v6, v7", w=['v6'], r=['v6', 'v7'])
    e.valu(f"v_add_u32 v{PX}, {XR0}, v6", w=[R(PX)], r=['v6'])
    for u in range(1, 4):
        e.valu(f"v_xor_b32 v{PX+u}, {u<<5}, v{PX}", w=[R(PX+u)], r=[R(PX)])
    e.valu("v_bfe_u32 v7, v3, 1, 3", w=['v7'], r=['v3'])
    e.valu("v_xor_b32 v7, v7, v2", w=['v7'], r=['v7', 'v2'])
    e.valu("v_lshlrev_b32 v7, 4, v7", w=['v7'], r=['v7'])
    e.valu("v_lshlrev_b32 v6, 7, v3", w=['v6'], r=['v3'])
    e.valu("v_add_u32 v6, v6, v7", w=['v6'], r=['v6', 'v7'])
    e.valu(f"v_add_u32 v{PX+4}, {XR0 + 128*128}, v6", w=[R(PX+4)], r=['v6'])
    e.valu(f"v_xor_b32 v{PX+5}, 64, v{PX+4}", w=[R(PX+5)], r=[R(PX+4)])
    e.valu("v_bfe_u32 v6, v1, 4, 1", w=['v6'], r=['v1'])
    e.valu("v_lshlrev_b32 v6, 1, v6", w=['v6'], r=['v6'])
    e.valu("v_and_b32 v7, 1, v1", w=['v7'], r=['v1'])
    e.valu("v_or_b32 v6, v6, v7", w=['v6'], r=['v6', 'v7'])
    e.valu("v_bfe_u32 v7, v1, 2, 2", w=['v7'], r=['v1'])
    e.valu("v_lshlrev_b32 v8, 2, v7", w=['v8'], r=['v7'])
    e.valu("v_xor_b32 v6, v6, v8", w=['v6'], r=['v6', 'v8'])
    e.valu("v_bfe_u32 v8, v1, 1, 1", w=['v8'], r=['v1'])
    e.valu("v_lshlrev_b32 v8, 3, v8", w=['v8'], r=['v8'])
    e.valu(f"v_lshlrev_b32 v{vT0}, 3, v5", w=[R(vT0)], r=['v5'])
    e.valu(f"v_add_u32 v{vT0}, v{vT0}, v7", w=[R(vT0)], r=[R(vT0), 'v7'])
    e.valu(f"v_lshlrev_b32 v{vT0}, 8, v{vT0}", w=[R(vT0)], r=[R(vT0)])
    e.valu(f"v_lshlrev_b32 v{vT1}, 4, v6", w=[R(vT1)], r=['v6'])
    e.valu(f"v_add3_u32 v{vT0}, v{vT0}, v{vT1}, v8", w=[R(vT0)], r=[R(vT0), R(vT1), 'v8'])
    e.valu(f"v_add_u32 v{vT0}, {WQ0}, v{vT0}", w=[R(vT0)], r=[R(vT0)])
    e.salu("s_lshl_b32 s33, s38, 7", w=['s33'])
    e.valu(f"v_xor_b32 v{PW}, s33, v{vT0}", w=[R(PW)], r=[R(vT0), 's33'])
    e.valu(f"v_xor_b32 v{PW+1}, 64, v{PW}", w=[R(PW+1)], r=[R(PW)])
    e.valu("v_and_b32 v6, 3, v1", w=['v6'], r=['v1'])
    e.salu("s_lshr_b32 s33, s32, 1"); e.salu("s_lshl_b32 s33, s33, 2", w=['s33'])
    e.valu(f"v_add_u32 v{vT0}, s33, v6", w=[R(vT0)], r=['v6', 's33'])
    e.valu("v_lshlrev_b32 v8, 2, v7", w=['v8'], r=['v7'])
    e.valu(f"v_xor_b32 v{vT0}, v{vT0}, v8", w=[R(vT0)], r=[R(vT0), 'v8'])
    e.valu(f"v_lshlrev_b32 v{vT0}, 4, v{vT0}", w=[R(vT0)], r=[R(vT0)])
    e.valu(f"v_lshlrev_b32 v{vT1}, 3, v2", w=[R(vT1)], r=['v2'])
    e.valu(f"v_add_u32 v{vT1}, v{vT1}, v7", w=[R(vT1)], r=[R(vT1), 'v7'])
    e.valu(f"v_lshlrev_b32 v{vT1}, 8, v{vT1}", w=[R(vT1)], r=[R(vT1)])
    e.salu("s_and_b32 s33, s32, 1"); e.salu("s_lshl_b32 s33, s33, 3"); e.salu(f"s_add_u32 s33, s33, {WQ0}", w=['s33'])
    e.valu(f"v_add3_u32 v{PW+2}, v{vT0}, v{vT1}, s33", w=[R(PW+2)], r=[R(vT0), R(vT1), 's33'])
    QACC = 64; QA8 = 96
    def setregs(t):
        base = 128 + (t & 1) * 64
        return base, base + 16, base + 48, base + 56
    def readsA(t):
        sl = t % 3
        XF, WF, X8F, W8F = setregs(t)
        ops = []
        def rd(*a): ops.append(lambda: e.ds_read(*a))
        for u in range(4):
            rd("ds_read_b128", XF + u * 4, 4, PX + u, sl * XSZ, ('fa', t))
            for tt in range(2):
                for part in range(2):
                    rd("ds_read_b64_tr_b16", WF + (u * 2 + tt) * 4 + part * 2, 2, PW + tt,
                       sl * WSZ + (16 * u + 4 * part) * 256, ('fa', t))
        for u2 in range(2):
            rd("ds_read_b128", X8F + u2 * 4, 4, PX + 4 + u2, sl * XSZ, ('fa', t))
            for part in range(2):
                rd("ds_read_b64_tr_b16", W8F + u2 * 4 + part * 2, 2, PW + 2,
                   sl * WSZ + (32 * u2 + 4 * part) * 256, ('fa', t))
        return ops
    waitA(0)
    e.barrier()
    for o in readsA(0): o()
    for t in range(9):
        e.wait_lgkm()
        if t + 1 < 9:
            waitA(t + 1, branchy=(t + 1 >= 7))
        e.barrier()
        stamp(e, 1 + t)
        if t + 3 < 9:
            issueA(t + 3)
        ops = readsA(t + 1) if t + 1 < 9 else []
        XF, WF, X8F, W8F = setregs(t)
        k = 0
        for u in range(4):
            for tt in range(2):
                e.mfma('32', QACC + tt * 16, WF + (u * 2 + tt) * 4, XF + u * 4, cin=(0 if (t == 0 and u == 0) else None))
                for o in ops[k:k + 3]: o()
                k += 3
        for u2 in range(2):
            e.mfma('16', QA8, W8F + u2 * 4, X8F + u2 * 4, cin=(0 if (t == 0 and u2 == 0) else None))
            for o in ops[k:k + 1]: o()
            k += 1
        if t == 5: dma_shared([0], True)
        if t == 6: dma_shared([1], True)
        if t == 7: dma_shared([2], True)
        if t == 8: dma_shared([3], False)
    TQ = 192
    for tt in range(2):
        for ip in range(2):
            for jj in range(4):
                a = QACC + tt * 16 + 8 * ip + 2 * jj
                d = TQ + (2 * tt + ip) * 4 + jj
                e.valu(f"v_cvt_pk_bf16_f32 v{d}, v{a}, v{a+1}", w=[R(d)], r=[R(a), R(a+1)])
    e.valu(f"v_cvt_pk_bf16_f32 v{TQ+16}, v{QA8}, v{QA8+1}", w=[R(TQ+16)], r=[R(QA8), R(QA8+1)])
    e.valu(f"v_cvt_pk_bf16_f32 v{TQ+17}, v{QA8+2}, v{QA8+3}", w=[R(TQ+17)], r=[R(QA8+2), R(QA8+3)])
    e.valu("v_lshlrev_b32 v8, 4, v1", w=['v8'], r=['v1'])
    e.salu("s_lshl_b32 s33, s37, 13"); e.salu(f"s_add_u32 s33, s33, {QX0}", w=['s33'])
    e.valu("v_add_u32 v7, s33, v8", w=['v7'], r=['v8', 's33'])
    e.salu("s_lshl_b32 s33, s38, 12", w=['s33'])
    e.valu("v_add_u32 v4, s33, v7", w=['v4'], r=['v7', 's33'])
    for k in range(4):
        e.ds_write("ds_write_b128", 4, TQ + k * 4, 4, k * 1024)
    e.salu("s_lshr_b32 s33, s32, 1"); e.salu("s_lshl_b32 s33, s33, 10")
    e.salu("s_and_b32 s36, s32, 1"); e.salu("s_lshl_b32 s36, s36, 3"); e.salu("s_add_u32 s33, s33, s36")
    e.salu(f"s_add_u32 s33, s33, {X80}", w=['s33'])
    e.valu("v_add_u32 v5, s33, v8", w=['v5'], r=['v8', 's33'])
    e.ds_write("ds_write_b64", 5, TQ + 16, 2, 0)
    e.salu(f"s_mov_b32 s61, {f32bits(THR):#x}")
    e.wait_lgkm()
    e.barrier()
    stamp(e, 10)
    labAux = newlab("AUX")
    e.salu("s_cmp_eq_u32 s38, 1"); e.salu(f"s_cbranch_scc1 {labAux}")
    vm0 = list(e.vm); h0 = list(e.hist)
    def V_(ops, t, w, r): ops.append(lambda: e.valu(t, w=w, r=r))
    def T_(ops, t, w, r): ops.append(lambda: e.trans(t, w=w, r=r))
    def lazy(ops, M, L, L2, MC, AL, t0, t1, O, nO):
        V_(ops, f"v_max_f32 v{t0}, v{t0}, v{t1}", [R(t0)], [R(t0), R(t1)])
        V_(ops, f"v_sub_f32 v{t1}, v{t0}, v{M}", [R(t1)], [R(M), R(t0)])
        def br():
            lab = newlab("lz")
            e.valu(f"v_cmp_lt_f32 vcc, s61, v{t1}", w=['vcc'], r=[R(t1), 's61'])
            e.nop(5)
            e.salu(f"s_cbranch_vccz {lab}")
            h = list(e.hist)
            e.valu(f"v_max_f32 v{t0}, v{t0}, v{M}", w=[R(t0)], r=[R(t0), R(M)])
            e.valu(f"v_sub_f32 v{t1}, v{M}, v{t0}", w=[R(t1)], r=[R(M), R(t0)])
            e.valu(f"v_mul_f32 v{t1}, s34, v{t1}", w=[R(t1)], r=[R(t1), 's34'])
            e.trans(f"v_exp_f32 v{AL}, v{t1}", w=[R(AL)], r=[R(t1)])
            e.valu(f"v_mov_b32 v{M}, v{t0}", w=[R(M)], r=[R(t0)])
            e.valu(f"v_mul_f32 v{MC}, s34, v{t0}", w=[R(MC)], r=[R(t0), 's34'])
            e.valu(f"v_mul_f32 v{L}, v{L}, v{AL}", w=[R(L)], r=[R(L), R(AL)])
            if L2 is not None:
                e.valu(f"v_mul_f32 v{L2}, v{L2}, v{AL}", w=[R(L2)], r=[R(L2), R(AL)])
            e.nop(12)
            for k in range(nO):
                e.valu(f"v_mul_f32 v{O+k}, v{O+k}, v{AL}", w=[R(O+k)], r=[R(O+k), R(AL)])
            e.nop(2)
            e.raw(f"{lab}:")
            e.hist = h
        ops.append(br)
    def run(mfs, after, fill):
        n = len(mfs); d = 0
        for k in range(n):
            mfs[k]()
            for r_ in after[k]: r_()
            tgt = (len(fill) * (k + 1)) // n
            while d < tgt:
                fill[d](); d += 1
        while d < len(fill):
            fill[d](); d += 1
    e.vm = []
    for s in range(8):
        e.ds_read("ds_read_b128", QF + s * 4, 4, 7, s * 1024, 'q')
    e.valu("v_and_b32 v4, 31, v1", w=['v4'], r=['v1'])
    e.valu("v_lshrrev_b32 v5, 5, v1", w=['v5'], r=['v1'])
    e.valu("v_and_b32 v6, 15, v4", w=['v6'], r=['v4'])
    e.valu("v_xor_b32 v6, v6, v5", w=['v6'], r=['v6', 'v5'])
    e.valu("v_lshlrev_b32 v6, 4, v6", w=['v6'], r=['v6'])
    e.valu("v_lshlrev_b32 v2, 8, v4", w=['v2'], r=['v4'])
    e.valu(f"v_add_u32 v{vKA0}, v6, v2", w=[R(vKA0)], r=['v6', 'v2'])
    e.valu("v_bfe_u32 v6, v1, 4, 1", w=['v6'], r=['v1'])
    e.valu("v_lshlrev_b32 v6, 1, v6", w=['v6'], r=['v6'])
    e.valu("v_and_b32 v2, 1, v1", w=['v2'], r=['v1'])
    e.valu("v_or_b32 v6, v6, v2", w=['v6'], r=['v6', 'v2'])
    e.valu("v_bfe_u32 v2, v1, 2, 2", w=['v2'], r=['v1'])
    e.valu("v_lshlrev_b32 v3, 2, v2", w=['v3'], r=['v2'])
    e.valu("v_xor_b32 v6, v6, v3", w=['v6'], r=['v6', 'v3'])
    e.valu("v_lshlrev_b32 v3, 1, v5", w=['v3'], r=['v5'])
    e.valu("v_xor_b32 v6, v6, v3", w=['v6'], r=['v6', 'v3'])
    e.valu("v_lshlrev_b32 v6, 4, v6", w=['v6'], r=['v6'])
    e.valu("v_lshlrev_b32 v3, 2, v5", w=['v3'], r=['v5'])
    e.valu("v_add_u32 v3, v3, v2", w=['v3'], r=['v3', 'v2'])
    e.valu("v_lshlrev_b32 v3, 8, v3", w=['v3'], r=['v3'])
    e.valu("v_bfe_u32 v2, v1, 1, 1", w=['v2'], r=['v1'])
    e.valu("v_lshlrev_b32 v2, 3, v2", w=['v2'], r=['v2'])
    e.valu(f"v_add3_u32 v{vVA0}, v3, v6, v2", w=[R(vVA0)], r=['v3', 'v6', 'v2'])
    e.wait_lgkm()
    e.barrier()
    stamp(e, 11)
    RS = 6
    def qk_ops(j):
        sb = SB + (j & 1) * 32
        reg = region('K', j)
        pre = []
        V_(pre, f"v_add_u32 v{KA}, {reg}, v{vKA0}", [R(KA)], [R(vKA0)])
        for s in range(1, 8):
            V_(pre, f"v_xor_b32 v{KA+s}, {s<<5}, v{KA}", [R(KA+s)], [R(KA)])
        rds, mfs = [], []
        for k in range(16):
            kt, s = divmod(k, 8)
            rds.append(lambda k=k, kt=kt, s=s: e.ds_read("ds_read_b128", KF + (k % RS) * 4, 4, KA + s, kt * 8192, ('kf', j, k)))
            def mf(k=k, kt=kt, s=s):
                if k % 2 == 0: e.wait_lgkm(('kf', j, k + 1))
                e.mfma('32', sb + kt * 16, KF + (k % RS) * 4, QF + s * 4, cin=(0 if s == 0 else None))
            mfs.append(mf)
        return pre, rds, mfs
    def pv_ops(j):
        reg = region('V', j)
        pre = []
        V_(pre, f"v_add_u32 v{VA}, {reg}, v{vVA0}", [R(VA)], [R(vVA0)])
        for dt in range(1, 4):
            V_(pre, f"v_xor_b32 v{VA+dt}, {dt<<6}, v{VA}", [R(VA+dt)], [R(VA)])
        rds, mfs = [], []
        for k in range(16):
            ks, dt = divmod(k, 4)
            def rd(k=k, ks=ks, dt=dt):
                for part in range(2):
                    e.ds_read("ds_read_b64_tr_b16", VF + (k % RS) * 4 + part * 2, 2, VA + dt, (16 * ks + 8 * part) * 256, ('vf', j, k))
            rds.append(rd)
            def mf(k=k, ks=ks, dt=dt):
                if k % 2 == 0: e.wait_lgkm(('vf', j, k + 1))
                e.mfma('32', OA + dt * 16, VF + (k % RS) * 4, PBr(j, ks), cin=(0 if (j == 0 and ks == 0) else None))
            mfs.append(mf)
        return pre, rds, mfs
    def sm_ops(j):
        sb = SB + (j & 1) * 32
        ops = []
        for half, tt in ((0, vT0), (1, vT1)):
            pass
        A0, A1 = [], []
        for half, tt, L_ in ((0, vT0, A0), (1, vT1, A1)):
            b = sb + 16 * half
            V_(L_, f"v_max3_f32 v{tt}, v{b}, v{b+1}, v{b+2}", [R(tt)], [R(b), R(b+1), R(b+2)])
            for k in range(3, 15, 2):
                V_(L_, f"v_max3_f32 v{tt}, v{tt}, v{b+k}, v{b+k+1}", [R(tt)], [R(tt), R(b+k), R(b+k+1)])
            V_(L_, f"v_max_f32 v{tt}, v{tt}, v{b+15}", [R(tt)], [R(tt), R(b+15)])
        for x, y in zip(A0, A1): ops += [x, y]
        V_(ops, f"v_max_f32 v{vT0}, v{vT0}, v{vT1}", [R(vT0)], [R(vT0), R(vT1)])
        V_(ops, f"v_mov_b32 v{vT1}, v{vT0}", [R(vT1)], [R(vT0)])
        ops.append(lambda: e.ins(f"v_permlane32_swap_b32 v{vT0}, v{vT1}", 'perm', w=[R(vT0), R(vT1)], r=[R(vT0), R(vT1)]))
        if j == 0:
            V_(ops, f"v_max_f32 v{vM}, v{vT0}, v{vT1}", [R(vM)], [R(vT0), R(vT1)])
            V_(ops, f"v_mul_f32 v{vMC}, s34, v{vM}", [R(vMC)], [R(vM), 's34'])
        else:
            lazy(ops, vM, vL, vL2, vMC, vAL, vT0, vT1, OA, 64)
        def expk(ops, ks):
            b = PBr(j, ks)
            for jj in range(8):
                V_(ops, f"v_fma_f32 v{b+jj}, v{b+jj}, s34, -v{vMC}", [R(b+jj)], [R(b+jj), 's34', R(vMC)])
            for jj in range(8):
                T_(ops, f"v_exp_f32 v{b+jj}, v{b+jj}", [R(b+jj)], [R(b+jj)])
            for jj in range(0, 8, 2):
                if j == 0 and ks == 0 and jj == 0:
                    V_(ops, f"v_mov_b32 v{vL}, v{b}", [R(vL)], [R(b)])
                    V_(ops, f"v_mov_b32 v{vL2}, v{b+1}", [R(vL2)], [R(b+1)])
                else:
                    V_(ops, f"v_add_f32 v{vL}, v{vL}, v{b+jj}", [R(vL)], [R(vL), R(b+jj)])
                    V_(ops, f"v_add_f32 v{vL2}, v{vL2}, v{b+jj+1}", [R(vL2)], [R(vL2), R(b+jj+1)])
            for jj in range(0, 8, 2):
                V_(ops, f"v_cvt_pk_bf16_f32 v{b+jj//2}, v{b+jj}, v{b+jj+1}", [R(b+jj//2)], [R(b+jj), R(b+jj+1)])
        expk(ops, 0); expk(ops, 1)
        B = []
        expk(B, 2); expk(B, 3)
        return ops, B
    kpre, krd, kmf = qk_ops(0)
    for o in kpre: o()
    for o in krd[:RS]: o()
    run(kmf, [[krd[k + RS]] if k + RS < 16 else [] for k in range(16)], [])
    for j in range(8):
        e.wait_lgkm()
        e.barrier()
        stamp(e, 12 + j)
        vpre, vrd, vmf = pv_ops(j)
        A, B = sm_ops(j)
        if j < 7:
            kpre, krd, kmf = qk_ops(j + 1)
            for o in kpre: o()
            for o in krd[:RS]: o()
            for o in vpre: o()
            after = [[krd[k + RS]] if k + RS < 16 else [vrd[k + RS - 16]] for k in range(16)]
            run(kmf, after, A)
        else:
            for o in vpre: o()
            for o in vrd[:RS]: o()
            for o in A: o()
        nB = len(B); d = 0
        for k in range(16):
            vmf[k]()
            if k + RS < 16: vrd[k + RS]()
            if k < 11:
                tgt = (nB * (k + 1)) // 11
                if k >= 6: tgt = max(tgt, nB // 2)
                if k == 10: tgt = nB
                while d < min(tgt, nB):
                    B[d](); d += 1
    e.barrier()
    stamp(e, 20)
    e.valu(f"v_add_f32 v{vL}, v{vL}, v{vL2}", w=[R(vL)], r=[R(vL), R(vL2)])
    e.valu(f"v_mov_b32 v{vT0}, v{vL}", w=[R(vT0)], r=[R(vL)])
    e.ins(f"v_permlane32_swap_b32 v{vT0}, v{vL}", 'perm', w=[R(vT0), R(vL)], r=[R(vT0), R(vL)])
    e.valu(f"v_add_f32 v{vL}, v{vL}, v{vT0}", w=[R(vL)], r=[R(vL), R(vT0)])
    e.trans(f"v_rcp_f32 v{vAL}, v{vL}", w=[R(vAL)], r=[R(vL)])
    e.valu("v_bfe_u32 v2, v1, 4, 1", w=['v2'], r=['v1'])
    e.valu("v_lshlrev_b32 v2, 13, v2", w=['v2'], r=['v2'])
    e.valu("v_lshrrev_b32 v3, 5, v1", w=['v3'], r=['v1'])
    e.valu("v_lshlrev_b32 v3, 4, v3", w=['v3'], r=['v3'])
    e.valu("v_and_b32 v4, 15, v1", w=['v4'], r=['v1'])
    e.valu("v_add3_u32 v2, v2, v3, v4", w=['v2'], r=['v2', 'v3', 'v4'])
    e.valu("v_lshlrev_b32 v2, 4, v2", w=['v2'], r=['v2'])
    e.salu("s_mul_i32 s33, s31, 9"); e.salu("s_lshl_b32 s36, s37, 1"); e.salu("s_add_u32 s33, s33, s36")
    e.salu("s_lshl_b32 s33, s33, 7"); e.salu("s_lshl_b32 s36, s30, 2"); e.salu("s_add_u32 s33, s33, s36")
    e.salu("s_lshl_b32 s33, s33, 10", w=['s33'])
    for dt in range(4):
        for ip in range(2):
            b = OA + dt * 16 + ip * 8
            d = SB + (dt * 2 + ip) * 4
            for jj in range(8):
                e.valu(f"v_mul_f32 v{b+jj}, v{b+jj}, v{vAL}", w=[R(b+jj)], r=[R(b+jj), R(vAL)])
            for jj in range(4):
                e.valu(f"v_cvt_pk_bf16_f32 v{d+jj}, v{b+2*jj}, v{b+2*jj+1}", w=[R(d+jj)], r=[R(b+2*jj), R(b+2*jj+1)])
            e.bstore(d, 4, 2, 24, 33, dt * 1024 + ip * 512)
    if STAMP: e.wait_vm()
    stamp(e, 21); stamp(e, 22)
    stamp_out(e, 23)
    e.raw("    s_endpgm")
    e.raw(f"{labAux}:")
    e.vm = list(vm0); e.hist = list(h0); e.lgkm = []
    aKA, aVA, aKA0, aVA0 = 10, 14, 28, 29
    e.valu(f"v_add_u32 v5, {X80}, v8", w=['v5'], r=['v8'])
    for s in range(4):
        e.ds_read("ds_read_b128", Q8 + s * 4, 4, 5, s * 1024, 'q')
    e.valu("v_lshrrev_b32 v2, 4, v1", w=['v2'], r=['v1'])
    e.valu("v_and_b32 v3, 15, v1", w=['v3'], r=['v1'])
    e.valu("v_bfe_u32 v4, v1, 2, 2", w=['v4'], r=['v1'])
    e.valu("v_and_b32 v5, 3, v1", w=['v5'], r=['v1'])
    e.salu("s_lshl_b32 s33, s37, 4", w=['s33'])
    e.valu("v_add_u32 v6, s33, v3", w=['v6'], r=['v3', 's33'])
    e.valu("v_lshlrev_b32 v6, 8, v6", w=['v6'], r=['v6'])
    e.valu("v_xor_b32 v7, v2, v3", w=['v7'], r=['v2', 'v3'])
    e.valu("v_lshlrev_b32 v7, 4, v7", w=['v7'], r=['v7'])
    e.valu(f"v_add_u32 v{aKA0}, v6, v7", w=[R(aKA0)], r=['v6', 'v7'])
    e.valu("v_lshlrev_b32 v6, 2, v2", w=['v6'], r=['v2'])
    e.valu("v_add3_u32 v6, v6, v4, s33", w=['v6'], r=['v6', 'v4', 's33'])
    e.valu("v_lshlrev_b32 v6, 8, v6", w=['v6'], r=['v6'])
    e.valu("v_lshlrev_b32 v7, 2, v4", w=['v7'], r=['v4'])
    e.valu("v_xor_b32 v7, v7, v5", w=['v7'], r=['v7', 'v5'])
    e.valu("v_and_b32 v9, 1, v2", w=['v9'], r=['v2'])
    e.valu("v_lshlrev_b32 v9, 1, v9", w=['v9'], r=['v9'])
    e.valu("v_xor_b32 v7, v7, v9", w=['v7'], r=['v7', 'v9'])
    e.valu("v_lshlrev_b32 v7, 4, v7", w=['v7'], r=['v7'])
    e.valu(f"v_add_u32 v{aVA0}, v6, v7", w=[R(aVA0)], r=['v6', 'v7'])
    e.wait_lgkm()
    e.wait_vm(('K', 0))
    e.barrier()
    stamp(e, 11)
    dmaItem(4); dmaItem(5)
    def qk8(j):
        reg = region('K', j)
        e.valu(f"v_add_u32 v{aKA}, {reg}, v{aKA0}", w=[R(aKA)], r=[R(aKA0)])
        for s in range(1, 4):
            e.valu(f"v_xor_b32 v{aKA+s}, {s<<6}, v{aKA}", w=[R(aKA+s)], r=[R(aKA)])
        for s in range(4):
            e.ds_read("ds_read_b128", K8F + s * 4, 4, aKA + s, 0, ('k8', s))
        for s in range(4):
            e.wait_lgkm(('k8', s))
            e.mfma('16', S8, K8F + s * 4, Q8 + s * 4, cin=(0 if s == 0 else None))
        ops = []
        V_(ops, f"v_max3_f32 v{vT0}, v{S8}, v{S8+1}, v{S8+2}", [R(vT0)], vs(S8, 3))
        V_(ops, f"v_max_f32 v{vT0}, v{vT0}, v{S8+3}", [R(vT0)], [R(vT0), R(S8+3)])
        V_(ops, f"v_mov_b32 v{vT1}, v{vT0}", [R(vT1)], [R(vT0)])
        ops.append(lambda: e.ins(f"v_permlane16_swap_b32 v{vT0}, v{vT1}", 'perm', w=[R(vT0), R(vT1)], r=[R(vT0), R(vT1)]))
        V_(ops, f"v_max_f32 v{vT0}, v{vT0}, v{vT1}", [R(vT0)], [R(vT0), R(vT1)])
        V_(ops, f"v_mov_b32 v{vT1}, v{vT0}", [R(vT1)], [R(vT0)])
        ops.append(lambda: e.ins(f"v_permlane32_swap_b32 v{vT0}, v{vT1}", 'perm', w=[R(vT0), R(vT1)], r=[R(vT0), R(vT1)]))
        if j == 0:
            V_(ops, f"v_max_f32 v{vM}, v{vT0}, v{vT1}", [R(vM)], [R(vT0), R(vT1)])
            V_(ops, f"v_mul_f32 v{vMC}, s34, v{vM}", [R(vMC)], [R(vM), 's34'])
        else:
            lazy(ops, vM, vL, None, vMC, vAL, vT0, vT1, O8, 32)
        for k in range(4):
            V_(ops, f"v_fma_f32 v{S8+k}, v{S8+k}, s34, -v{vMC}", [R(S8+k)], [R(S8+k), 's34', R(vMC)])
        for k in range(4):
            T_(ops, f"v_exp_f32 v{S8+k}, v{S8+k}", [R(S8+k)], [R(S8+k)])
        for k in range(4):
            if j == 0 and k == 0:
                V_(ops, f"v_mov_b32 v{vL}, v{S8}", [R(vL)], [R(S8)])
            else:
                V_(ops, f"v_add_f32 v{vL}, v{vL}, v{S8+k}", [R(vL)], [R(vL), R(S8+k)])
        V_(ops, f"v_cvt_pk_bf16_f32 v{P8}, v{S8}, v{S8+1}", [R(P8)], [R(S8), R(S8+1)])
        V_(ops, f"v_cvt_pk_bf16_f32 v{P8+1}, v{S8+2}, v{S8+3}", [R(P8+1)], [R(S8+2), R(S8+3)])
        for o in ops: o()
    def pv8(j):
        reg = region('V', j)
        e.valu(f"v_add_u32 v{aVA}, {reg}, v{aVA0}", w=[R(aVA)], r=[R(aVA0)])
        for u in range(1, 4):
            e.valu(f"v_xor_b32 v{aVA+u}, {u<<6}, v{aVA}", w=[R(aVA+u)], r=[R(aVA)])
        for u in range(4):
            for tt in range(2):
                e.ds_read("ds_read_b64_tr_b16", V8F + (u * 2 + tt) * 2, 2, aVA + u, 8 * tt, ('v8', u, tt))
        for u in range(4):
            for tt in range(2):
                e.wait_lgkm(('v8', u, tt))
                e.mfma('16h', O8 + (u * 2 + tt) * 4, V8F + (u * 2 + tt) * 2, P8, cin=(0 if j == 0 else None))
    qk8(0)
    dmaItem(6)
    for j in range(8):
        e.wait_lgkm()
        if j < 7: e.wait_vm(('K', j + 1))
        e.wait_vm(('V', j))
        if j == 6: e.wait_vm('wo')
        e.barrier()
        stamp(e, 12 + j)
        if 2 * j + 7 < 16: dmaItem(2 * j + 7)
        pv8(j)
        if j < 7: qk8(j + 1)
        if 2 * j + 8 < 16: dmaItem(2 * j + 8)
        if j == 4:
            e.salu("s_lshr_b32 s33, s2, 1"); e.salu(f"s_mul_i32 s33, s33, {32*1152}")
            e.salu("s_and_b32 s36, s2, 1"); e.salu("s_mul_i32 s36, s36, 576"); e.salu("s_add_u32 s33, s33, s36")
            e.salu(f"s_sub_u32 s58, {4096*1152}, s33")
            e.salu("s_add_u32 s56, s56, s33"); e.salu("s_addc_u32 s57, s57, 0"); e.salu("s_and_b32 s57, s57, 0xffff")
            e.salu("s_mov_b32 s59, 0x00020000")
            for i in range(5):
                e.salu("s_mul_i32 s33, s37, 5"); e.salu(f"s_add_u32 s33, s33, {i}"); e.salu("s_min_u32 s33, s33, 17")
                e.salu("s_lshl_b32 s36, s33, 6", w=['s36'])
                e.valu("v_add_u32 v2, s36, v1", w=['v2'], r=['v1', 's36'])
                e.valu("v_mul_u32_u24 v3, 0x1c72, v2", w=['v3'], r=['v2'])
                e.valu("v_lshrrev_b32 v3, 18, v3", w=['v3'], r=['v3'])
                e.valu("v_mul_u32_u24 v4, 36, v3", w=['v4'], r=['v3'])
                e.valu("v_sub_u32 v4, v2, v4", w=['v4'], r=['v2', 'v4'])
                e.valu("v_lshlrev_b32 v4, 4, v4", w=['v4'], r=['v4'])
                e.valu("v_mul_u32_u24 v3, 1152, v3", w=['v3'], r=['v3'])
                e.valu("v_add_u32 v3, v3, v4", w=['v3'], r=['v3', 'v4'])
                e.salu("s_lshl_b32 s33, s33, 10"); e.salu(f"s_add_u32 m0, s33, {6*REG}", w=['m0'])
                e.dma(3, 56, None, 'wo')
        if j == 6:
            e.valu("v_lshrrev_b32 v2, 4, v1", w=['v2'], r=['v1'])
            e.valu("v_bfe_u32 v3, v1, 2, 2", w=['v3'], r=['v1'])
            e.valu("v_lshlrev_b32 v2, 3, v2", w=['v2'], r=['v2'])
            e.valu("v_add_u32 v2, v2, v3", w=['v2'], r=['v2', 'v3'])
            e.valu("v_mul_u32_u24 v2, 576, v2", w=['v2'], r=['v2'])
            e.valu("v_and_b32 v3, 3, v1", w=['v3'], r=['v1'])
            e.valu("v_lshlrev_b32 v3, 3, v3", w=['v3'], r=['v3'])
            e.valu("v_add_u32 v2, v2, v3", w=['v2'], r=['v2', 'v3'])
            e.valu(f"v_add_u32 v2, {6*REG}, v2", w=['v2'], r=['v2'])
            WT = 140
            for i in range(5):
                e.salu(f"s_add_u32 s33, s37, {4*i}"); e.salu("s_min_u32 s33, s33, 17")
                e.salu("s_lshl_b32 s36, s33, 5", w=['s36'])
                e.valu("v_add_u32 v3, s36, v2", w=['v3'], r=['v2', 's36'])
                for part in range(2):
                    e.ds_read("ds_read_b64_tr_b16", WT + i * 4 + part * 2, 2, 3, part * 4 * 576, ('wt', i))
            e.salu("s_mov_b32 s45, s28"); e.salu("s_and_b32 s49, s29, 0xffff"); e.salu("s_mov_b32 s48, s28")
            e.salu(f"s_mov_b32 s50, {WOF0 + WOFSZ}"); e.salu("s_mov_b32 s51, 0x00020000")
            for i in range(5):
                e.salu(f"s_add_u32 s33, s37, {4*i}"); e.salu("s_min_u32 s33, s33, 17")
                e.salu("s_lshr_b32 s36, s2, 1"); e.salu("s_mul_i32 s36, s36, 36"); e.salu("s_add_u32 s33, s33, s36")
                e.salu("s_and_b32 s36, s2, 1"); e.salu("s_mul_i32 s36, s36, 18"); e.salu("s_add_u32 s33, s33, s36")
                e.salu("s_lshl_b32 s33, s33, 10"); e.salu(f"s_add_u32 s33, s33, {WOF0}", w=['s33'])
                e.wait_lgkm(('wt', i))
                e.bstore(WT + i * 4, 4, 8, 48, 33, 0, 'wst')
    e.valu(f"v_mov_b32 v{vT1}, v{vL}", w=[R(vT1)], r=[R(vL)])
    e.ins(f"v_permlane16_swap_b32 v{vL}, v{vT1}", 'perm', w=[R(vL), R(vT1)], r=[R(vL), R(vT1)])
    e.valu(f"v_add_f32 v{vL}, v{vL}, v{vT1}", w=[R(vL)], r=[R(vL), R(vT1)])
    e.valu(f"v_mov_b32 v{vT1}, v{vL}", w=[R(vT1)], r=[R(vL)])
    e.ins(f"v_permlane32_swap_b32 v{vL}, v{vT1}", 'perm', w=[R(vL), R(vT1)], r=[R(vL), R(vT1)])
    e.valu(f"v_add_f32 v{vL}, v{vL}, v{vT1}", w=[R(vL)], r=[R(vL), R(vT1)])
    OX = 8 * REG; MX = 0
    e.salu("s_lshl_b32 s33, s37, 13", w=['s33'])
    e.valu(f"v_add_u32 v2, {OX}, v8", w=['v2'], r=['v8'])
    e.valu("v_add_u32 v3, s33, v2", w=['v3'], r=['v2', 's33'])
    for T in range(8):
        e.ds_write("ds_write_b128", 3, O8 + T * 4, 4, T * 1024)
    e.valu("v_lshrrev_b32 v4, 1, v8", w=['v4'], r=['v8'])
    e.salu("s_lshl_b32 s33, s37, 9", w=['s33'])
    e.valu("v_add_u32 v5, s33, v4", w=['v5'], r=['v4', 's33'])
    e.ds_write("ds_write_b64", 5, vM, 2, MX)
    e.wait_lgkm()
    e.barrier()
    stamp(e, 20)
    ML = 128; OP = 136
    for a2 in range(4):
        e.ds_read("ds_read_b64", ML + a2 * 2, 2, 4, MX + a2 * 512, 'ml')
    e.salu("s_lshl_b32 s33, s37, 11", w=['s33'])
    e.valu("v_add_u32 v3, s33, v2", w=['v3'], r=['v2', 's33'])
    for a2 in range(4):
        for tt in range(2):
            e.ds_read("ds_read_b128", OP + (a2 * 2 + tt) * 4, 4, 3, a2 * 8192 + tt * 1024, 'op')
    e.wait_lgkm('ml')
    e.valu(f"v_max3_f32 v{vM}, v{ML}, v{ML+2}, v{ML+4}", w=[R(vM)], r=[R(ML), R(ML+2), R(ML+4)])
    e.valu(f"v_max_f32 v{vM}, v{vM}, v{ML+6}", w=[R(vM)], r=[R(vM), R(ML+6)])
    for a2 in range(4):
        e.valu(f"v_sub_f32 v{ML+2*a2}, v{ML+2*a2}, v{vM}", w=[R(ML+2*a2)], r=[R(ML+2*a2), R(vM)])
        e.valu(f"v_mul_f32 v{ML+2*a2}, s34, v{ML+2*a2}", w=[R(ML+2*a2)], r=[R(ML+2*a2), 's34'])
    for a2 in range(4):
        e.trans(f"v_exp_f32 v{ML+2*a2}, v{ML+2*a2}", w=[R(ML+2*a2)], r=[R(ML+2*a2)])
    e.valu(f"v_mul_f32 v{vL}, v{ML}, v{ML+1}", w=[R(vL)], r=[R(ML), R(ML+1)])
    for a2 in range(1, 4):
        e.valu(f"v_fma_f32 v{vL}, v{ML+2*a2}, v{ML+2*a2+1}, v{vL}", w=[R(vL)], r=[R(ML+2*a2), R(ML+2*a2+1), R(vL)])
    e.trans(f"v_rcp_f32 v{vAL}, v{vL}", w=[R(vAL)], r=[R(vL)])
    for a2 in range(4):
        e.valu(f"v_mul_f32 v{ML+2*a2}, v{ML+2*a2}, v{vAL}", w=[R(ML+2*a2)], r=[R(ML+2*a2), R(vAL)])
    e.wait_lgkm('op')
    for k in range(8):
        e.valu(f"v_mul_f32 v{OP+k}, v{OP+k}, v{ML}", w=[R(OP+k)], r=[R(OP+k), R(ML)])
        for a2 in range(1, 4):
            e.valu(f"v_fma_f32 v{OP+k}, v{OP+a2*8+k}, v{ML+2*a2}, v{OP+k}", w=[R(OP+k)], r=[R(OP+a2*8+k), R(ML+2*a2), R(OP+k)])
    for jj in range(4):
        e.valu(f"v_cvt_pk_bf16_f32 v{Q8+jj}, v{OP+2*jj}, v{OP+2*jj+1}", w=[R(Q8+jj)], r=[R(OP+2*jj), R(OP+2*jj+1)])
    e.salu("s_mul_i32 s33, s31, 9"); e.salu("s_add_u32 s33, s33, 8"); e.salu("s_lshl_b32 s33, s33, 7")
    e.salu("s_lshl_b32 s36, s30, 2"); e.salu("s_add_u32 s33, s33, s36"); e.salu("s_add_u32 s33, s33, s37")
    e.salu("s_lshl_b32 s33, s33, 10", w=['s33'])
    e.bstore(Q8, 4, 8, 24, 33, 0)
    if STAMP: e.wait_vm()
    stamp(e, 21); stamp(e, 22)
    stamp_out(e, 23)
    e.raw(f"{name}_done:")
    e.raw("    s_endpgm")
    return e.text(), 256
```

```python
from em import *
R = lambda x: f'v{x}'
WOF0 = 16 << 20
WOFSZ = 128 * 36 * 1024
K2_D = 5
def gen_k2(name):
    e = Em()
    e.raw(f".globl {name}\n.p2align 8\n.type {name},@function\n{name}:")
    e.salu("s_cmp_ge_u32 s2, 216", r=['s2'])
    e.salu(f"s_cbranch_scc1 {name}_done")
    e.salu("s_load_dwordx2 s[6:7], s[0:1], 40", w=ss(6,2))
    e.salu("s_load_dwordx2 s[20:21], s[0:1], 56", w=ss(20,2))
    e.salu("s_and_b32 s22, s2, 7", w=['s22'])
    e.salu("s_lshr_b32 s23, s2, 3", w=['s23'])
    e.salu("s_mul_i32 s24, s23, 0x5556", w=['s24'])
    e.salu("s_lshr_b32 s24, s24, 16", w=['s24'])
    e.salu("s_mul_i32 s25, s24, 3", w=['s25'])
    e.salu("s_sub_u32 s25, s23, s25", w=['s25'])
    e.valu("v_and_b32 v1, 63, v0", w=['v1'], r=['v0'])
    e.valu("v_lshrrev_b32 v2, 6, v0", w=['v2'], r=['v0'])
    e.ins("v_readfirstlane_b32 s26, v2", 'rfl', w=['s26'], r=['v2'])
    e.valu("v_lshlrev_b32 v4, 4, v1", w=['v4'], r=['v1'])
    e.valu("v_add_u32 v5, 0x20000, v4", w=['v5'], r=['v4'])
    e.valu("v_add_u32 v6, 0x40000, v4", w=['v6'], r=['v4'])
    e.salu("s_mul_i32 s27, s22, 9"); e.salu("s_mul_i32 s28, s25, 3"); e.salu("s_add_u32 s27, s27, s28")
    e.salu("s_lshl_b32 s27, s27, 7")
    e.salu("s_lshl_b32 s28, s26, 5", r=['s26'])
    e.salu("s_add_u32 s27, s27, s28")
    e.salu("s_lshl_b32 s27, s27, 10")
    e.salu(f"s_mul_i32 s28, s26, {32*36}"); e.salu("s_lshl_b32 s29, s24, 2"); e.salu("s_add_u32 s28, s28, s29")
    e.salu("s_lshl_b32 s28, s28, 10"); e.salu(f"s_add_u32 s28, s28, {WOF0}")
    e.ins("s_waitcnt lgkmcnt(0)", 'wait')
    e.salu("s_mov_b32 s12, s20"); e.salu("s_and_b32 s13, s21, 0xffff")
    e.salu(f"s_mov_b32 s14, {WOF0 + WOFSZ}"); e.salu("s_mov_b32 s15, 0x00020000")
    e.salu("s_mov_b32 s16, s6"); e.salu("s_and_b32 s17, s7, 0xffff")
    e.salu(f"s_mov_b32 s18, {1152*1152}"); e.salu("s_mov_b32 s19, 0x00020000", w=['s19'])
    ACC = 16
    F = 64
    D = K2_D
    def issue(i):
        fb = F + (i % D) * 28
        for ct in range(4):
            e.bload(fb + 12 + ct * 4, 4, 4, 12, 28, ct * 1024, ('f', i))
        for rt in range(3):
            e.bload(fb + rt * 4, 4, 4 + rt, 12, 27, 0, ('f', i))
        e.salu(f"s_add_u32 s28, s28, {36*1024}", w=['s28'])
        e.salu("s_add_u32 s27, s27, 1024", w=['s27'])
    for i in range(D):
        issue(i)
    for i in range(32):
        e.wait_vm(('f', i))
        fb = F + (i % D) * 28
        for ct in range(4):
            for rt in range(3):
                e.mfma('16', ACC + (ct * 3 + rt) * 4, fb + 12 + ct * 4, fb + rt * 4, cin=(0 if i == 0 else None))
        if i + D < 32:
            issue(i + D)
    e.valu("v_and_b32 v2, 15, v1", w=['v2'], r=['v1'])
    e.valu("v_mul_u32_u24 v2, 272, v2", w=['v2'], r=['v2'])
    e.valu("v_lshrrev_b32 v3, 4, v1", w=['v3'], r=['v1'])
    e.valu("v_lshlrev_b32 v3, 4, v3", w=['v3'], r=['v3'])
    e.valu("v_add_u32 v2, v2, v3", w=['v2'], r=['v2', 'v3'])
    e.salu("s_mul_i32 s30, s26, 13056", w=['s30'])
    e.valu("v_add_u32 v2, s30, v2", w=['v2'], r=['v2', 's30'])
    for ct in range(4):
        for rt in range(3):
            e.ds_write("ds_write_b128", 2, ACC + (ct * 3 + rt) * 4, 4, rt * 16 * 272 + ct * 64)
    e.wait_lgkm()
    e.barrier()
    e.valu("v_lshrrev_b32 v2, 4, v0", w=['v2'], r=['v0'])
    e.valu("v_and_b32 v3, 15, v0", w=['v3'], r=['v0'])
    e.valu("v_mul_u32_u24 v4, 272, v2", w=['v4'], r=['v2'])
    e.valu("v_lshlrev_b32 v5, 4, v3", w=['v5'], r=['v3'])
    e.valu("v_add_u32 v4, v4, v5", w=['v4'], r=['v4', 'v5'])
    RR = 64
    for i in range(3):
        for w in range(4):
            e.ds_read("ds_read_b128", RR + (i * 4 + w) * 4, 4, 4, i * 16 * 272 + w * 13056, ('r', i))
    e.salu("s_mul_i32 s30, s22, 144"); e.salu("s_mul_i32 s31, s25, 48"); e.salu("s_add_u32 s30, s30, s31")
    e.salu("s_mul_i32 s30, s30, 1152"); e.salu("s_lshl_b32 s31, s24, 7"); e.salu("s_add_u32 s30, s30, s31", w=['s30'])
    e.valu("v_mul_u32_u24 v5, 1152, v2", w=['v5'], r=['v2'])
    e.valu("v_lshlrev_b32 v6, 3, v3", w=['v6'], r=['v3'])
    e.valu("v_add_u32 v5, v5, v6", w=['v5'], r=['v5', 'v6'])
    for i in range(3):
        e.wait_lgkm(('r', i))
        b0 = RR + i * 16
        for j in range(4):
            e.valu(f"v_add_f32 v{b0+j}, v{b0+j}, v{b0+4+j}", w=[R(b0+j)], r=[R(b0+j), R(b0+4+j)])
            e.valu(f"v_add_f32 v{b0+8+j}, v{b0+8+j}, v{b0+12+j}", w=[R(b0+8+j)], r=[R(b0+8+j), R(b0+12+j)])
        for j in range(4):
            e.valu(f"v_add_f32 v{b0+j}, v{b0+j}, v{b0+8+j}", w=[R(b0+j)], r=[R(b0+j), R(b0+8+j)])
        e.valu(f"v_cvt_pk_bf16_f32 v{b0+4}, v{b0}, v{b0+1}", w=[R(b0+4)], r=[R(b0), R(b0+1)])
        e.valu(f"v_cvt_pk_bf16_f32 v{b0+5}, v{b0+2}, v{b0+3}", w=[R(b0+5)], r=[R(b0+2), R(b0+3)])
        if i > 0:
            e.valu(f"v_add_u32 v5, {16*1152}, v5", w=['v5'], r=['v5'])
        e.bstore(b0 + 4, 2, 5, 16, 30, 0)
    e.raw(f"{name}_done:")
    e.raw("    s_endpgm")
    return e.text(), F + 28 * D
```

```python
from em import *
from k2f import WOF0, WOFSZ
import math, struct
CSC = 128 ** -0.5 * math.log2(math.e)
def f32bits(x): return struct.unpack('<I', struct.pack('<f', x))[0]

REG = 16384
XR0 = 49152; XSZ = 18432
WQ0 = 114688; WSZ = 16384
QX0 = 131072
X80 = 114688
STGREG = {3: 32, 4: 40, 5: 48, 6: 56, 7: 112, 8: 120}
NEARLY = 3
THR = 8.0 / CSC
ITEMS = [('K', 0), ('K', 1), ('V', 0), ('K', 2), ('V', 1), ('K', 3), ('V', 2), ('K', 4), ('V', 3), ('K', 5),
         ('V', 4), ('K', 6), ('V', 5), ('K', 7), ('V', 6), ('V', 7)]
def region(kind, j): return (ITEMS.index((kind, j)) % 10) * REG
STAMP = False
STAGGER = False
KVT = 5
LEAD = 16
AUXPRIO = False
STGV = False
PRIO = False
def stamp(e, idx):
    if not STAMP: return
    e.ins("s_memtime s[40:41]", 'salu', w=['s40', 's41'])
    e.ins("s_waitcnt lgkmcnt(0)", 'wait'); e.lgkm = []
    e.salu(f"s_mov_b32 s{64+idx}, s40", w=[f's{64+idx}'])
def stamp_out(e, n):
    if not STAMP: return
    e.salu("s_mov_b32 s44, s28"); e.salu("s_and_b32 s45, s29, 0xffff"); e.salu("s_mov_b32 s46, 0x8000000"); e.salu("s_mov_b32 s47, 0x00020000")
    e.salu("s_lshl_b32 s42, s2, 3"); e.salu("s_add_u32 s42, s42, s32")
    e.salu("s_lshl_b32 s42, s42, 7"); e.salu("s_add_u32 s42, s42, 0x4000000", w=['s42'])
    e.valu("v_mov_b32 v3, 0", w=['v3'])
    for i in range(n):
        e.valu(f"v_mov_b32 v4, s{64+i}", w=['v4'], r=[f's{64+i}'])
        e.bstore(4, 1, 3, 44, 42, 4 * i)
        e.ins("s_waitcnt vmcnt(0)", 'wait'); e.vm = []

R = lambda x: f'v{x}'
KA, VA = 10, 18
vM, vL, vMC, vAL, vT0, vT1, vL2 = 22, 23, 24, 25, 26, 27, 9
vKA0, vVA0, vKO, vVO = 28, 29, 30, 31
QF, OA, SB, KF, VF = 32, 64, 128, 192, 216
Q8, O8, S8, P8, K8F, V8F = 32, 64, 96, 100, 104, 120
vXO, vWQO = 100, 101
def PBr(j, ks): return SB + (j & 1) * 32 + (ks >> 1) * 16 + (ks & 1) * 8

def gen_k1(name):
    e = Em()
    nlab = [0]
    def newlab(tag):
        nlab[0] += 1
        return f"{name}_{tag}{nlab[0]}"
    e.raw(f".globl {name}\n.p2align 8\n.type {name},@function\n{name}:")
    e.salu("s_cmp_ge_u32 s2, 256", r=['s2'])
    e.salu(f"s_cbranch_scc1 {name}_done")
    e.salu("s_load_dwordx4 s[4:7], s[0:1], 0", w=ss(4, 4))
    e.salu("s_load_dwordx4 s[24:27], s[0:1], 16", w=ss(24, 4))
    e.salu("s_load_dwordx2 s[28:29], s[0:1], 56", w=ss(28, 2))
    e.salu("s_load_dwordx2 s[56:57], s[0:1], 32", w=ss(56, 2))
    e.salu("s_and_b32 s30, s2, 7"); e.salu("s_lshl_b32 s30, s30, 2")
    e.salu("s_lshr_b32 s31, s2, 3"); e.salu("s_and_b32 s31, s31, 3")
    e.salu("s_add_u32 s30, s30, s31")
    e.salu("s_lshr_b32 s31, s2, 5")
    e.salu("s_and_b32 s60, s31, 1")
    e.valu("v_and_b32 v1, 63, v0", w=['v1'], r=['v0'])
    e.valu("v_lshrrev_b32 v2, 6, v0", w=['v2'], r=['v0'])
    e.ins("v_readfirstlane_b32 s32, v2", 'rfl', w=['s32'], r=['v2'])
    e.valu("v_lshrrev_b32 v2, 4, v1", w=['v2'], r=['v1'])
    e.valu("v_and_b32 v3, 15, v1", w=['v3'], r=['v1'])
    e.salu("s_lshl_b32 s35, s32, 10", w=['s35'], r=['s32'])
    e.salu("s_lshl_b32 s33, s32, 2", w=['s33'])
    e.valu("v_add_u32 v4, s33, v2", w=['v4'], r=['v2', 's33'])
    e.salu("s_and_b32 s33, s32, 3"); e.salu("s_lshl_b32 s33, s33, 2", w=['s33'])
    e.valu("v_add_u32 v7, s33, v2", w=['v7'], r=['v2', 's33'])
    e.valu("v_xor_b32 v5, v7, v3", w=['v5'], r=['v7', 'v3'])
    e.valu("v_lshlrev_b32 v5, 4, v5", w=['v5'], r=['v5'])
    e.valu("v_lshlrev_b32 v6, 8, v7", w=['v6'], r=['v7'])
    e.valu(f"v_add_u32 v{vKO}, v6, v5", w=[R(vKO)], r=['v6', 'v5'])
    e.salu("s_and_b32 s33, s32, 1"); e.salu("s_lshl_b32 s33, s33, 1", w=['s33'])
    e.valu("v_lshlrev_b32 v5, 2, v2", w=['v5'], r=['v2'])
    e.valu("v_or_b32 v5, s33, v5", w=['v5'], r=['v5', 's33'])
    e.valu("v_xor_b32 v5, v5, v3", w=['v5'], r=['v5', 'v3'])
    e.valu("v_lshlrev_b32 v5, 4, v5", w=['v5'], r=['v5'])
    e.valu(f"v_add_u32 v{vVO}, v6, v5", w=[R(vVO)], r=['v6', 'v5'])
    e.salu("s_and_b32 s44, s32, 3"); e.salu("s_lshl_b32 s44, s44, 10", w=['s44'])
    e.salu("s_lshr_b32 s38, s32, 2", w=['s38'])
    e.valu("v_lshlrev_b32 v5, 2, v2", w=['v5'], r=['v2'])
    e.valu("v_xor_b32 v5, v5, v3", w=['v5'], r=['v5', 'v3'])
    e.valu("v_lshlrev_b32 v5, 4, v5", w=['v5'], r=['v5'])
    e.valu("v_lshlrev_b32 v6, 13, v4", w=['v6'], r=['v4'])
    e.valu(f"v_add_u32 v{vWQO}, v6, v5", w=[R(vWQO)], r=['v6', 'v5'])
    e.salu("s_and_b32 s33, s32, 1"); e.salu("s_lshl_b32 s33, s33, 2", w=['s33'])
    e.valu("v_or_b32 v5, s33, v2", w=['v5'], r=['v2', 's33'])
    e.valu("v_and_b32 v6, 7, v1", w=['v6'], r=['v1'])
    e.valu("v_xor_b32 v5, v5, v6", w=['v5'], r=['v5', 'v6'])
    e.valu("v_lshlrev_b32 v5, 4, v5", w=['v5'], r=['v5'])
    e.valu("v_lshrrev_b32 v6, 3, v1", w=['v6'], r=['v1'])
    e.salu("s_lshl_b32 s33, s32, 3", w=['s33'])
    e.valu("v_add_u32 v6, s33, v6", w=['v6'], r=['v6', 's33'])
    e.valu("v_mul_u32_u24 v6, 1152, v6", w=['v6'], r=['v6'])
    e.valu(f"v_add_u32 v{vXO}, v6, v5", w=[R(vXO)], r=['v6', 'v5'])
    e.salu("s_and_b32 s33, s32, 1"); e.salu("s_lshl_b32 s39, s33, 3"); e.salu("s_add_u32 s39, s39, 128")
    e.salu("s_lshl_b32 s43, s32, 3"); e.salu("s_sub_u32 s39, s39, s43"); e.salu("s_mul_i32 s39, s39, 1152")
    e.salu("s_add_u32 s43, s33, 16"); e.salu("s_lshl_b32 s43, s43, 10", w=['s43'])
    e.ins("s_waitcnt lgkmcnt(0)", 'wait')
    stamp(e, 0)
    e.salu("s_mul_i32 s33, s31, 165888")
    e.salu("s_add_u32 s8, s4, s33"); e.salu("s_addc_u32 s9, s5, 0"); e.salu("s_and_b32 s9, s9, 0xffff")
    e.salu("s_mov_b32 s10, 165888"); e.salu("s_mov_b32 s11, 0x00020000")
    e.salu("s_lshl_b32 s33, s31, 5"); e.salu("s_add_u32 s33, s33, s30"); e.salu("s_lshl_b32 s33, s33, 17")
    e.salu("s_add_u32 s12, s6, s33"); e.salu("s_addc_u32 s13, s7, 0"); e.salu("s_and_b32 s13, s13, 0xffff")
    e.salu("s_mov_b32 s14, 131072"); e.salu("s_mov_b32 s15, 0x00020000")
    e.salu("s_add_u32 s16, s24, s33"); e.salu("s_addc_u32 s17, s25, 0"); e.salu("s_and_b32 s17, s17, 0xffff")
    e.salu("s_mov_b32 s18, 131072"); e.salu("s_mov_b32 s19, 0x00020000")
    e.salu("s_lshl_b32 s33, s30, 8")
    e.salu("s_add_u32 s20, s26, s33"); e.salu("s_addc_u32 s21, s27, 0"); e.salu("s_and_b32 s21, s21, 0xffff")
    e.salu(f"s_sub_u32 s22, {576*8192}, s33"); e.salu("s_mov_b32 s23, 0x00020000")
    def issueA(t):
        sl = t % 3
        for i in range(2):
            e.salu(f"s_mov_b32 s36, {(64*t + 32*i)*8192}", w=['s36'])
            e.salu(f"s_add_u32 m0, s35, {WQ0 + sl*WSZ + i*8192}", w=['m0'], r=['s35'])
            e.dma(vWQO, 20, 36, ('A', t))
        for i in range(2):
            e.salu(f"s_mov_b32 s36, {64*i*1152 + 128*t}", w=['s36'])
            e.salu(f"s_add_u32 m0, s35, {XR0 + sl*XSZ + i*8192}", w=['m0'], r=['s35'])
            e.dma(vXO, 8, 36, ('A', t))
        lab = newlab("xs")
        e.salu("s_cmp_ge_u32 s32, 2"); e.salu(f"s_cbranch_scc1 {lab}")
        e.salu(f"s_add_u32 s36, s39, {128*t}", w=['s36'])
        e.salu(f"s_add_u32 m0, s43, {XR0 + sl*XSZ}", w=['m0'], r=['s43'])
        e.ins(f"buffer_load_dwordx4 v{vXO}, s[8:11], s36 offen offset:0 lds", 'dma', [], ['m0'])
        e.raw(f"{lab}:")
        e.vm.append(('Ax', t))
    def waitA(t, branchy=False):
        idx = [i for i, tg in enumerate(e.vm) if tg == ('Ax', t)][-1]
        later = [tg for tg in e.vm[idx + 1:] if tg[0] != 'Ax']
        if branchy:
            la, lb = newlab("wa"), newlab("wb")
            laterA = [tg for tg in later if tg[0] == 'A']
            e.salu("s_cmp_eq_u32 s38, 0"); e.salu(f"s_cbranch_scc1 {la}")
            if STAGGER:
                e.salu("s_cmp_eq_u32 s60, 1"); e.salu(f"s_cbranch_scc1 {la}")
            e.ins(f"s_waitcnt vmcnt({len(later)})", 'wait')
            e.salu(f"s_branch {lb}")
            e.raw(f"{la}:")
            e.ins(f"s_waitcnt vmcnt({len(laterA)})", 'wait')
            e.raw(f"{lb}:")
        else:
            e.ins(f"s_waitcnt vmcnt({len(later)})", 'wait')
        e.vm = e.vm[idx + 1:]
    def dmaItem(i, track=True):
        kind, j = ITEMS[i]
        base = (i % 10) * REG
        srd = 12 if kind == 'K' else 16
        vo = vKO if kind == 'K' else vVO
        for k in range(4):
            e.salu(f"s_mov_b32 s36, {j*16384 + k*4096}", w=['s36'])
            e.salu(f"s_add_u32 m0, s44, {base + k*4096}", w=['m0'], r=['s44'])
            e.dma(vo, srd, 36, (kind, j), nt=True)
            if not track: e.vm.pop()
    def dma_shared(items, only_g0):
        lab = newlab("dl")
        e.salu("s_cmp_eq_u32 s38, 0"); e.salu(f"s_cbranch_scc1 {lab}")
        if only_g0 and STAGGER:
            e.salu("s_cmp_eq_u32 s60, 1"); e.salu(f"s_cbranch_scc1 {lab}")
        for i in items: dmaItem(i)
        e.raw(f"{lab}:")
    def by_group(f0, f1):
        la, lb = newlab("b0"), newlab("b1")
        e.salu("s_cmp_eq_u32 s60, 1"); e.salu(f"s_cbranch_scc1 {la}")
        h = list(e.hist)
        f0()
        e.salu(f"s_branch {lb}")
        e.raw(f"{la}:")
        e.hist = list(h)
        vmsave = list(e.vm); lg = list(e.lgkm)
        f1()
        e.vm = vmsave
        e.raw(f"{lb}:")
        e.hist = list(h)
    def dump(items):
        e.valu("v_lshlrev_b32 v4, 4, v1", w=['v4'], r=['v1'])
        e.valu("v_add_u32 v4, s35, v4", w=['v4'], r=['v4', 's35'])
        for i in items:
            e.valu(f"v_add_u32 v5, {(i % 10) * REG}, v4", w=['v5'], r=['v4'])
            for k in range(2):
                e.ds_write("ds_write_b128", 5, STGREG[i] + 4 * k, 4, k * 8192)
        e.wait_lgkm()
    if STAGGER:
        lab = newlab("de")
        e.salu("s_cmp_eq_u32 s60, 0"); e.salu(f"s_cbranch_scc1 {lab}")
        e.salu("s_cmp_eq_u32 s38, 0"); e.salu(f"s_cbranch_scc1 {lab}")
        for i in range(NEARLY): dmaItem(i, track=False)
        e.raw(f"{lab}:")
    issueA(0); issueA(1); issueA(2)
    e.salu("s_mov_b32 s24, s28"); e.salu("s_and_b32 s25, s29, 0xffff")
    e.salu(f"s_mov_b32 s26, {72*128*1024}"); e.salu("s_mov_b32 s27, 0x00020000")
    e.salu(f"s_mov_b32 s34, {f32bits(CSC):#x}")
    e.salu("s_and_b32 s37, s32, 3", r=['s32'])
    e.salu("s_lshr_b32 s38, s32, 2", r=['s32'])
    PX, PW = 102, 108
    e.valu("v_and_b32 v4, 31, v1", w=['v4'], r=['v1'])
    e.valu("v_lshrrev_b32 v5, 5, v1", w=['v5'], r=['v1'])
    e.salu("s_lshl_b32 s33, s37, 5", w=['s33'])
    e.valu("v_add_u32 v6, s33, v4", w=['v6'], r=['v4', 's33'])
    e.valu("v_bfe_u32 v7, v6, 1, 3", w=['v7'], r=['v6'])
    e.valu("v_xor_b32 v7, v7, v5", w=['v7'], r=['v7', 'v5'])
    e.valu("v_lshlrev_b32 v7, 4, v7", w=['v7'], r=['v7'])
    e.valu("v_lshlrev_b32 v6, 7, v6", w=['v6'], r=['v6'])
    e.valu("v_add_u32 v6, v6, v7", w=['v6'], r=['v6', 'v7'])
    e.valu(f"v_add_u32 v{PX}, {XR0}, v6", w=[R(PX)], r=['v6'])
    for u in range(1, 4):
        e.valu(f"v_xor_b32 v{PX+u}, {u<<5}, v{PX}", w=[R(PX+u)], r=[R(PX)])
    e.valu("v_bfe_u32 v7, v3, 1, 3", w=['v7'], r=['v3'])
    e.valu("v_xor_b32 v7, v7, v2", w=['v7'], r=['v7', 'v2'])
    e.valu("v_lshlrev_b32 v7, 4, v7", w=['v7'], r=['v7'])
    e.valu("v_lshlrev_b32 v6, 7, v3", w=['v6'], r=['v3'])
    e.valu("v_add_u32 v6, v6, v7", w=['v6'], r=['v6', 'v7'])
    e.valu(f"v_add_u32 v{PX+4}, {XR0 + 128*128}, v6", w=[R(PX+4)], r=['v6'])
    e.valu(f"v_xor_b32 v{PX+5}, 64, v{PX+4}", w=[R(PX+5)], r=[R(PX+4)])
    e.valu("v_bfe_u32 v6, v1, 4, 1", w=['v6'], r=['v1'])
    e.valu("v_lshlrev_b32 v6, 1, v6", w=['v6'], r=['v6'])
    e.valu("v_and_b32 v7, 1, v1", w=['v7'], r=['v1'])
    e.valu("v_or_b32 v6, v6, v7", w=['v6'], r=['v6', 'v7'])
    e.valu("v_bfe_u32 v7, v1, 2, 2", w=['v7'], r=['v1'])
    e.valu("v_lshlrev_b32 v8, 2, v7", w=['v8'], r=['v7'])
    e.valu("v_xor_b32 v6, v6, v8", w=['v6'], r=['v6', 'v8'])
    e.valu("v_bfe_u32 v8, v1, 1, 1", w=['v8'], r=['v1'])
    e.valu("v_lshlrev_b32 v8, 3, v8", w=['v8'], r=['v8'])
    e.valu(f"v_lshlrev_b32 v{vT0}, 3, v5", w=[R(vT0)], r=['v5'])
    e.valu(f"v_add_u32 v{vT0}, v{vT0}, v7", w=[R(vT0)], r=[R(vT0), 'v7'])
    e.valu(f"v_lshlrev_b32 v{vT0}, 8, v{vT0}", w=[R(vT0)], r=[R(vT0)])
    e.valu(f"v_lshlrev_b32 v{vT1}, 4, v6", w=[R(vT1)], r=['v6'])
    e.valu(f"v_add3_u32 v{vT0}, v{vT0}, v{vT1}, v8", w=[R(vT0)], r=[R(vT0), R(vT1), 'v8'])
    e.valu(f"v_add_u32 v{vT0}, {WQ0}, v{vT0}", w=[R(vT0)], r=[R(vT0)])
    e.salu("s_lshl_b32 s33, s38, 7", w=['s33'])
    e.valu(f"v_xor_b32 v{PW}, s33, v{vT0}", w=[R(PW)], r=[R(vT0), 's33'])
    e.valu(f"v_xor_b32 v{PW+1}, 64, v{PW}", w=[R(PW+1)], r=[R(PW)])
    e.valu("v_and_b32 v6, 3, v1", w=['v6'], r=['v1'])
    e.salu("s_lshr_b32 s33, s32, 1"); e.salu("s_lshl_b32 s33, s33, 2", w=['s33'])
    e.valu(f"v_add_u32 v{vT0}, s33, v6", w=[R(vT0)], r=['v6', 's33'])
    e.valu("v_lshlrev_b32 v8, 2, v7", w=['v8'], r=['v7'])
    e.valu(f"v_xor_b32 v{vT0}, v{vT0}, v8", w=[R(vT0)], r=[R(vT0), 'v8'])
    e.valu(f"v_lshlrev_b32 v{vT0}, 4, v{vT0}", w=[R(vT0)], r=[R(vT0)])
    e.valu(f"v_lshlrev_b32 v{vT1}, 3, v2", w=[R(vT1)], r=['v2'])
    e.valu(f"v_add_u32 v{vT1}, v{vT1}, v7", w=[R(vT1)], r=[R(vT1), 'v7'])
    e.valu(f"v_lshlrev_b32 v{vT1}, 8, v{vT1}", w=[R(vT1)], r=[R(vT1)])
    e.salu("s_and_b32 s33, s32, 1"); e.salu("s_lshl_b32 s33, s33, 3"); e.salu(f"s_add_u32 s33, s33, {WQ0}", w=['s33'])
    e.valu(f"v_add3_u32 v{PW+2}, v{vT0}, v{vT1}, s33", w=[R(PW+2)], r=[R(vT0), R(vT1), 's33'])
    QACC = 64; QA8 = 96
    def setregs(t):
        base = 128 + (t & 1) * 64
        return base, base + 16, base + 48, base + 56
    def readsA(t):
        sl = t % 3
        XF, WF, X8F, W8F = setregs(t)
        ops = []
        def rd(*a): ops.append(lambda: e.ds_read(*a))
        for u in range(4):
            rd("ds_read_b128", XF + u * 4, 4, PX + u, sl * XSZ, ('fa', t))
            for tt in range(2):
                for part in range(2):
                    rd("ds_read_b64_tr_b16", WF + (u * 2 + tt) * 4 + part * 2, 2, PW + tt,
                       sl * WSZ + (16 * u + 4 * part) * 256, ('fa', t))
        for u2 in range(2):
            rd("ds_read_b128", X8F + u2 * 4, 4, PX + 4 + u2, sl * XSZ, ('fa', t))
            for part in range(2):
                rd("ds_read_b64_tr_b16", W8F + u2 * 4 + part * 2, 2, PW + 2,
                   sl * WSZ + (32 * u2 + 4 * part) * 256, ('fa', t))
        return ops
    waitA(0)
    e.barrier()
    for o in readsA(0): o()
    for t in range(9):
        e.wait_lgkm()
        if t + 1 < 9:
            waitA(t + 1, branchy=(t + 1 >= KVT + 2))
        e.barrier()
        stamp(e, 1 + t)
        if t + 3 < 9:
            issueA(t + 3)
        ops = readsA(t + 1) if t + 1 < 9 else []
        XF, WF, X8F, W8F = setregs(t)
        k = 0
        for u in range(4):
            for tt in range(2):
                e.mfma('32', QACC + tt * 16, WF + (u * 2 + tt) * 4, XF + u * 4, cin=(0 if (t == 0 and u == 0) else None))
                for o in ops[k:k + 3]: o()
                k += 3
        for u2 in range(2):
            e.mfma('16', QA8, W8F + u2 * 4, X8F + u2 * 4, cin=(0 if (t == 0 and u2 == 0) else None))
            for o in ops[k:k + 1]: o()
            k += 1
        if t == KVT: dma_shared([0], True)
        if t == KVT + 1: dma_shared([1], True)
        if t == KVT + 2: dma_shared([2], True)
        if t == 8: dma_shared([3], False)
    TQ = 192
    for tt in range(2):
        for ip in range(2):
            for jj in range(4):
                a = QACC + tt * 16 + 8 * ip + 2 * jj
                d = TQ + (2 * tt + ip) * 4 + jj
                e.valu(f"v_cvt_pk_bf16_f32 v{d}, v{a}, v{a+1}", w=[R(d)], r=[R(a), R(a+1)])
    e.valu(f"v_cvt_pk_bf16_f32 v{TQ+16}, v{QA8}, v{QA8+1}", w=[R(TQ+16)], r=[R(QA8), R(QA8+1)])
    e.valu(f"v_cvt_pk_bf16_f32 v{TQ+17}, v{QA8+2}, v{QA8+3}", w=[R(TQ+17)], r=[R(QA8+2), R(QA8+3)])
    e.valu("v_lshlrev_b32 v8, 4, v1", w=['v8'], r=['v1'])
    e.salu("s_lshl_b32 s33, s37, 13"); e.salu(f"s_add_u32 s33, s33, {QX0}", w=['s33'])
    e.valu("v_add_u32 v7, s33, v8", w=['v7'], r=['v8', 's33'])
    e.salu("s_lshl_b32 s33, s38, 12", w=['s33'])
    e.valu("v_add_u32 v4, s33, v7", w=['v4'], r=['v7', 's33'])
    for k in range(4):
        e.ds_write("ds_write_b128", 4, TQ + k * 4, 4, k * 1024)
    e.salu("s_lshr_b32 s33, s32, 1"); e.salu("s_lshl_b32 s33, s33, 10")
    e.salu("s_and_b32 s36, s32, 1"); e.salu("s_lshl_b32 s36, s36, 3"); e.salu("s_add_u32 s33, s33, s36")
    e.salu(f"s_add_u32 s33, s33, {X80}", w=['s33'])
    e.valu("v_add_u32 v5, s33, v8", w=['v5'], r=['v8', 's33'])
    e.ds_write("ds_write_b64", 5, TQ + 16, 2, 0)
    e.salu(f"s_mov_b32 s61, {f32bits(THR):#x}")
    e.wait_lgkm()
    e.barrier()
    stamp(e, 10)
    labAux = newlab("AUX")
    e.salu("s_cmp_eq_u32 s38, 1"); e.salu(f"s_cbranch_scc1 {labAux}")
    vm0 = list(e.vm); h0 = list(e.hist)
    def V_(ops, t, w, r): ops.append(lambda: e.valu(t, w=w, r=r))
    def T_(ops, t, w, r): ops.append(lambda: e.trans(t, w=w, r=r))
    def lazy(ops, M, L, L2, MC, AL, t0, t1, O, nO):
        V_(ops, f"v_max_f32 v{t0}, v{t0}, v{t1}", [R(t0)], [R(t0), R(t1)])
        V_(ops, f"v_sub_f32 v{t1}, v{t0}, v{M}", [R(t1)], [R(M), R(t0)])
        def br():
            lab = newlab("lz")
            e.valu(f"v_cmp_lt_f32 vcc, s61, v{t1}", w=['vcc'], r=[R(t1), 's61'])
            e.nop(5)
            e.salu(f"s_cbranch_vccz {lab}")
            h = list(e.hist)
            e.valu(f"v_max_f32 v{t0}, v{t0}, v{M}", w=[R(t0)], r=[R(t0), R(M)])
            e.valu(f"v_sub_f32 v{t1}, v{M}, v{t0}", w=[R(t1)], r=[R(M), R(t0)])
            e.valu(f"v_mul_f32 v{t1}, s34, v{t1}", w=[R(t1)], r=[R(t1), 's34'])
            e.trans(f"v_exp_f32 v{AL}, v{t1}", w=[R(AL)], r=[R(t1)])
            e.valu(f"v_mov_b32 v{M}, v{t0}", w=[R(M)], r=[R(t0)])
            e.valu(f"v_mul_f32 v{MC}, s34, v{t0}", w=[R(MC)], r=[R(t0), 's34'])
            e.valu(f"v_mul_f32 v{L}, v{L}, v{AL}", w=[R(L)], r=[R(L), R(AL)])
            if L2 is not None:
                e.valu(f"v_mul_f32 v{L2}, v{L2}, v{AL}", w=[R(L2)], r=[R(L2), R(AL)])
            e.nop(12)
            for k in range(nO):
                e.valu(f"v_mul_f32 v{O+k}, v{O+k}, v{AL}", w=[R(O+k)], r=[R(O+k), R(AL)])
            e.nop(2)
            e.raw(f"{lab}:")
            e.hist = h
        ops.append(br)
    def run(mfs, after, fill, lead=0):
        n = len(mfs); d = 0
        while d < min(lead, len(fill)):
            fill[d](); d += 1
        for k in range(n):
            mfs[k]()
            for r_ in after[k]: r_()
            tgt = lead + ((len(fill) - lead) * (k + 1)) // n
            while d < tgt:
                fill[d](); d += 1
        while d < len(fill):
            fill[d](); d += 1
    e.vm = []
    for s in range(8):
        e.ds_read("ds_read_b128", QF + s * 4, 4, 7, s * 1024, 'q')
    e.valu("v_and_b32 v4, 31, v1", w=['v4'], r=['v1'])
    e.valu("v_lshrrev_b32 v5, 5, v1", w=['v5'], r=['v1'])
    e.valu("v_and_b32 v6, 15, v4", w=['v6'], r=['v4'])
    e.valu("v_xor_b32 v6, v6, v5", w=['v6'], r=['v6', 'v5'])
    e.valu("v_lshlrev_b32 v6, 4, v6", w=['v6'], r=['v6'])
    e.valu("v_lshlrev_b32 v2, 8, v4", w=['v2'], r=['v4'])
    e.valu(f"v_add_u32 v{vKA0}, v6, v2", w=[R(vKA0)], r=['v6', 'v2'])
    e.valu("v_bfe_u32 v6, v1, 4, 1", w=['v6'], r=['v1'])
    e.valu("v_lshlrev_b32 v6, 1, v6", w=['v6'], r=['v6'])
    e.valu("v_and_b32 v2, 1, v1", w=['v2'], r=['v1'])
    e.valu("v_or_b32 v6, v6, v2", w=['v6'], r=['v6', 'v2'])
    e.valu("v_bfe_u32 v2, v1, 2, 2", w=['v2'], r=['v1'])
    e.valu("v_lshlrev_b32 v3, 2, v2", w=['v3'], r=['v2'])
    e.valu("v_xor_b32 v6, v6, v3", w=['v6'], r=['v6', 'v3'])
    e.valu("v_lshlrev_b32 v3, 1, v5", w=['v3'], r=['v5'])
    e.valu("v_xor_b32 v6, v6, v3", w=['v6'], r=['v6', 'v3'])
    e.valu("v_lshlrev_b32 v6, 4, v6", w=['v6'], r=['v6'])
    e.valu("v_lshlrev_b32 v3, 2, v5", w=['v3'], r=['v5'])
    e.valu("v_add_u32 v3, v3, v2", w=['v3'], r=['v3', 'v2'])
    e.valu("v_lshlrev_b32 v3, 8, v3", w=['v3'], r=['v3'])
    e.valu("v_bfe_u32 v2, v1, 1, 1", w=['v2'], r=['v1'])
    e.valu("v_lshlrev_b32 v2, 3, v2", w=['v2'], r=['v2'])
    e.valu(f"v_add3_u32 v{vVA0}, v3, v6, v2", w=[R(vVA0)], r=['v3', 'v6', 'v2'])
    e.wait_lgkm()
    e.barrier()
    stamp(e, 11)
    RS = 6
    def qk_ops(j):
        sb = SB + (j & 1) * 32
        reg = region('K', j)
        pre = []
        V_(pre, f"v_add_u32 v{KA}, {reg}, v{vKA0}", [R(KA)], [R(vKA0)])
        for s in range(1, 8):
            V_(pre, f"v_xor_b32 v{KA+s}, {s<<5}, v{KA}", [R(KA+s)], [R(KA)])
        rds, mfs = [], []
        for k in range(16):
            kt, s = divmod(k, 8)
            rds.append(lambda k=k, kt=kt, s=s: e.ds_read("ds_read_b128", KF + (k % RS) * 4, 4, KA + s, kt * 8192, ('kf', j, k)))
            def mf(k=k, kt=kt, s=s):
                if k % 2 == 0: e.wait_lgkm(('kf', j, k + 1))
                e.mfma('32', sb + kt * 16, KF + (k % RS) * 4, QF + s * 4, cin=(0 if s == 0 else None))
            mfs.append(mf)
        return pre, rds, mfs
    def pv_ops(j):
        reg = region('V', j)
        pre = []
        V_(pre, f"v_add_u32 v{VA}, {reg}, v{vVA0}", [R(VA)], [R(vVA0)])
        for dt in range(1, 4):
            V_(pre, f"v_xor_b32 v{VA+dt}, {dt<<6}, v{VA}", [R(VA+dt)], [R(VA)])
        rds, mfs = [], []
        for k in range(16):
            ks, dt = divmod(k, 4)
            def rd(k=k, ks=ks, dt=dt):
                for part in range(2):
                    e.ds_read("ds_read_b64_tr_b16", VF + (k % RS) * 4 + part * 2, 2, VA + dt, (16 * ks + 8 * part) * 256, ('vf', j, k))
            rds.append(rd)
            def mf(k=k, ks=ks, dt=dt):
                if k % 2 == 0: e.wait_lgkm(('vf', j, k + 1))
                e.mfma('32', OA + dt * 16, VF + (k % RS) * 4, PBr(j, ks), cin=(0 if (j == 0 and ks == 0) else None))
            mfs.append(mf)
        return pre, rds, mfs
    def sm_ops(j):
        sb = SB + (j & 1) * 32
        ops = []
        for half, tt in ((0, vT0), (1, vT1)):
            pass
        A0, A1 = [], []
        for half, tt, L_ in ((0, vT0, A0), (1, vT1, A1)):
            b = sb + 16 * half
            V_(L_, f"v_max3_f32 v{tt}, v{b}, v{b+1}, v{b+2}", [R(tt)], [R(b), R(b+1), R(b+2)])
            for k in range(3, 15, 2):
                V_(L_, f"v_max3_f32 v{tt}, v{tt}, v{b+k}, v{b+k+1}", [R(tt)], [R(tt), R(b+k), R(b+k+1)])
            V_(L_, f"v_max_f32 v{tt}, v{tt}, v{b+15}", [R(tt)], [R(tt), R(b+15)])
        for x, y in zip(A0, A1): ops += [x, y]
        V_(ops, f"v_max_f32 v{vT0}, v{vT0}, v{vT1}", [R(vT0)], [R(vT0), R(vT1)])
        V_(ops, f"v_mov_b32 v{vT1}, v{vT0}", [R(vT1)], [R(vT0)])
        ops.append(lambda: e.ins(f"v_permlane32_swap_b32 v{vT0}, v{vT1}", 'perm', w=[R(vT0), R(vT1)], r=[R(vT0), R(vT1)]))
        if j == 0:
            V_(ops, f"v_max_f32 v{vM}, v{vT0}, v{vT1}", [R(vM)], [R(vT0), R(vT1)])
            V_(ops, f"v_mul_f32 v{vMC}, s34, v{vM}", [R(vMC)], [R(vM), 's34'])
        else:
            lazy(ops, vM, vL, vL2, vMC, vAL, vT0, vT1, OA, 64)
        def expk(ops, ks):
            b = PBr(j, ks)
            for jj in range(8):
                V_(ops, f"v_fma_f32 v{b+jj}, v{b+jj}, s34, -v{vMC}", [R(b+jj)], [R(b+jj), 's34', R(vMC)])
            for jj in range(8):
                T_(ops, f"v_exp_f32 v{b+jj}, v{b+jj}", [R(b+jj)], [R(b+jj)])
            for jj in range(0, 8, 2):
                if j == 0 and ks == 0 and jj == 0:
                    V_(ops, f"v_mov_b32 v{vL}, v{b}", [R(vL)], [R(b)])
                    V_(ops, f"v_mov_b32 v{vL2}, v{b+1}", [R(vL2)], [R(b+1)])
                else:
                    V_(ops, f"v_add_f32 v{vL}, v{vL}, v{b+jj}", [R(vL)], [R(vL), R(b+jj)])
                    V_(ops, f"v_add_f32 v{vL2}, v{vL2}, v{b+jj+1}", [R(vL2)], [R(vL2), R(b+jj+1)])
            for jj in range(0, 8, 2):
                V_(ops, f"v_cvt_pk_bf16_f32 v{b+jj//2}, v{b+jj}, v{b+jj+1}", [R(b+jj//2)], [R(b+jj), R(b+jj+1)])
        expk(ops, 0); expk(ops, 1)
        B = []
        expk(B, 2); expk(B, 3)
        return ops, B
    kpre, krd, kmf = qk_ops(0)
    for o in kpre: o()
    for o in krd[:RS]: o()
    run(kmf, [[krd[k + RS]] if k + RS < 16 else [] for k in range(16)], [])
    for j in range(8):
        e.wait_lgkm()
        if j == 6: stamp(e, 25)
        e.barrier()
        stamp(e, 12 + j)
        vpre, vrd, vmf = pv_ops(j)
        A, B = sm_ops(j)
        if j < 7:
            kpre, krd, kmf = qk_ops(j + 1)
            for o in kpre: o()
            for o in krd[:RS]: o()
            for o in vpre: o()
            after = [[krd[k + RS]] if k + RS < 16 else [vrd[k + RS - 16]] for k in range(16)]
            if j == 5: stamp(e, 23)
            run(kmf, after, A, lead=LEAD)
            if j == 5: stamp(e, 24)
        else:
            for o in vpre: o()
            for o in vrd[:RS]: o()
            for o in A: o()
        nB = len(B); d = 0
        for k in range(16):
            vmf[k]()
            if k + RS < 16: vrd[k + RS]()
            if k < 11:
                tgt = (nB * (k + 1)) // 11
                if k >= 6: tgt = max(tgt, nB // 2)
                if k == 10: tgt = nB
                while d < min(tgt, nB):
                    B[d](); d += 1
    e.barrier()
    stamp(e, 20)
    e.valu(f"v_add_f32 v{vL}, v{vL}, v{vL2}", w=[R(vL)], r=[R(vL), R(vL2)])
    e.valu(f"v_mov_b32 v{vT0}, v{vL}", w=[R(vT0)], r=[R(vL)])
    e.ins(f"v_permlane32_swap_b32 v{vT0}, v{vL}", 'perm', w=[R(vT0), R(vL)], r=[R(vT0), R(vL)])
    e.valu(f"v_add_f32 v{vL}, v{vL}, v{vT0}", w=[R(vL)], r=[R(vL), R(vT0)])
    e.trans(f"v_rcp_f32 v{vAL}, v{vL}", w=[R(vAL)], r=[R(vL)])
    e.valu("v_bfe_u32 v2, v1, 4, 1", w=['v2'], r=['v1'])
    e.valu("v_lshlrev_b32 v2, 13, v2", w=['v2'], r=['v2'])
    e.valu("v_lshrrev_b32 v3, 5, v1", w=['v3'], r=['v1'])
    e.valu("v_lshlrev_b32 v3, 4, v3", w=['v3'], r=['v3'])
    e.valu("v_and_b32 v4, 15, v1", w=['v4'], r=['v1'])
    e.valu("v_add3_u32 v2, v2, v3, v4", w=['v2'], r=['v2', 'v3', 'v4'])
    e.valu("v_lshlrev_b32 v2, 4, v2", w=['v2'], r=['v2'])
    e.salu("s_mul_i32 s33, s31, 9"); e.salu("s_lshl_b32 s36, s37, 1"); e.salu("s_add_u32 s33, s33, s36")
    e.salu("s_lshl_b32 s33, s33, 7"); e.salu("s_lshl_b32 s36, s30, 2"); e.salu("s_add_u32 s33, s33, s36")
    e.salu("s_lshl_b32 s33, s33, 10", w=['s33'])
    for dt in range(4):
        for ip in range(2):
            b = OA + dt * 16 + ip * 8
            d = SB + (dt * 2 + ip) * 4
            for jj in range(8):
                e.valu(f"v_mul_f32 v{b+jj}, v{b+jj}, v{vAL}", w=[R(b+jj)], r=[R(b+jj), R(vAL)])
            for jj in range(4):
                e.valu(f"v_cvt_pk_bf16_f32 v{d+jj}, v{b+2*jj}, v{b+2*jj+1}", w=[R(d+jj)], r=[R(b+2*jj), R(b+2*jj+1)])
            e.bstore(d, 4, 2, 24, 33, dt * 1024 + ip * 512)
    if STAMP: e.wait_vm()
    stamp(e, 21); stamp(e, 22)
    stamp_out(e, 26)
    e.raw("    s_endpgm")
    e.raw(f"{labAux}:")
    e.vm = list(vm0); e.hist = list(h0); e.lgkm = []
    aKA, aVA, aKA0, aVA0 = 10, 14, 28, 29
    if AUXPRIO: e.salu("s_setprio 2")
    e.valu(f"v_add_u32 v5, {X80}, v8", w=['v5'], r=['v8'])
    for s in range(4):
        e.ds_read("ds_read_b128", Q8 + s * 4, 4, 5, s * 1024, 'q')
    e.valu("v_lshrrev_b32 v2, 4, v1", w=['v2'], r=['v1'])
    e.valu("v_and_b32 v3, 15, v1", w=['v3'], r=['v1'])
    e.valu("v_bfe_u32 v4, v1, 2, 2", w=['v4'], r=['v1'])
    e.valu("v_and_b32 v5, 3, v1", w=['v5'], r=['v1'])
    e.salu("s_lshl_b32 s33, s37, 4", w=['s33'])
    e.valu("v_add_u32 v6, s33, v3", w=['v6'], r=['v3', 's33'])
    e.valu("v_lshlrev_b32 v6, 8, v6", w=['v6'], r=['v6'])
    e.valu("v_xor_b32 v7, v2, v3", w=['v7'], r=['v2', 'v3'])
    e.valu("v_lshlrev_b32 v7, 4, v7", w=['v7'], r=['v7'])
    e.valu(f"v_add_u32 v{aKA0}, v6, v7", w=[R(aKA0)], r=['v6', 'v7'])
    e.valu("v_lshlrev_b32 v6, 2, v2", w=['v6'], r=['v2'])
    e.valu("v_add3_u32 v6, v6, v4, s33", w=['v6'], r=['v6', 'v4', 's33'])
    e.valu("v_lshlrev_b32 v6, 8, v6", w=['v6'], r=['v6'])
    e.valu("v_lshlrev_b32 v7, 2, v4", w=['v7'], r=['v4'])
    e.valu("v_xor_b32 v7, v7, v5", w=['v7'], r=['v7', 'v5'])
    e.valu("v_and_b32 v9, 1, v2", w=['v9'], r=['v2'])
    e.valu("v_lshlrev_b32 v9, 1, v9", w=['v9'], r=['v9'])
    e.valu("v_xor_b32 v7, v7, v9", w=['v7'], r=['v7', 'v9'])
    e.valu("v_lshlrev_b32 v7, 4, v7", w=['v7'], r=['v7'])
    e.valu(f"v_add_u32 v{aVA0}, v6, v7", w=[R(aVA0)], r=['v6', 'v7'])
    e.wait_lgkm()
    e.wait_vm(('K', 0))
    e.barrier()
    stamp(e, 11)
    dmaItem(4); dmaItem(5)
    def qk8(j):
        reg = region('K', j)
        e.valu(f"v_add_u32 v{aKA}, {reg}, v{aKA0}", w=[R(aKA)], r=[R(aKA0)])
        for s in range(1, 4):
            e.valu(f"v_xor_b32 v{aKA+s}, {s<<6}, v{aKA}", w=[R(aKA+s)], r=[R(aKA)])
        for s in range(4):
            e.ds_read("ds_read_b128", K8F + s * 4, 4, aKA + s, 0, ('k8', s))
        for s in range(4):
            e.wait_lgkm(('k8', s))
            e.mfma('16', S8, K8F + s * 4, Q8 + s * 4, cin=(0 if s == 0 else None))
        ops = []
        V_(ops, f"v_max3_f32 v{vT0}, v{S8}, v{S8+1}, v{S8+2}", [R(vT0)], vs(S8, 3))
        V_(ops, f"v_max_f32 v{vT0}, v{vT0}, v{S8+3}", [R(vT0)], [R(vT0), R(S8+3)])
        V_(ops, f"v_mov_b32 v{vT1}, v{vT0}", [R(vT1)], [R(vT0)])
        ops.append(lambda: e.ins(f"v_permlane16_swap_b32 v{vT0}, v{vT1}", 'perm', w=[R(vT0), R(vT1)], r=[R(vT0), R(vT1)]))
        V_(ops, f"v_max_f32 v{vT0}, v{vT0}, v{vT1}", [R(vT0)], [R(vT0), R(vT1)])
        V_(ops, f"v_mov_b32 v{vT1}, v{vT0}", [R(vT1)], [R(vT0)])
        ops.append(lambda: e.ins(f"v_permlane32_swap_b32 v{vT0}, v{vT1}", 'perm', w=[R(vT0), R(vT1)], r=[R(vT0), R(vT1)]))
        if j == 0:
            V_(ops, f"v_max_f32 v{vM}, v{vT0}, v{vT1}", [R(vM)], [R(vT0), R(vT1)])
            V_(ops, f"v_mul_f32 v{vMC}, s34, v{vM}", [R(vMC)], [R(vM), 's34'])
        else:
            lazy(ops, vM, vL, None, vMC, vAL, vT0, vT1, O8, 32)
        for k in range(4):
            V_(ops, f"v_fma_f32 v{S8+k}, v{S8+k}, s34, -v{vMC}", [R(S8+k)], [R(S8+k), 's34', R(vMC)])
        for k in range(4):
            T_(ops, f"v_exp_f32 v{S8+k}, v{S8+k}", [R(S8+k)], [R(S8+k)])
        for k in range(4):
            if j == 0 and k == 0:
                V_(ops, f"v_mov_b32 v{vL}, v{S8}", [R(vL)], [R(S8)])
            else:
                V_(ops, f"v_add_f32 v{vL}, v{vL}, v{S8+k}", [R(vL)], [R(vL), R(S8+k)])
        V_(ops, f"v_cvt_pk_bf16_f32 v{P8}, v{S8}, v{S8+1}", [R(P8)], [R(S8), R(S8+1)])
        V_(ops, f"v_cvt_pk_bf16_f32 v{P8+1}, v{S8+2}, v{S8+3}", [R(P8+1)], [R(S8+2), R(S8+3)])
        for o in ops: o()
    def pv8(j):
        reg = region('V', j)
        e.valu(f"v_add_u32 v{aVA}, {reg}, v{aVA0}", w=[R(aVA)], r=[R(aVA0)])
        for u in range(1, 4):
            e.valu(f"v_xor_b32 v{aVA+u}, {u<<6}, v{aVA}", w=[R(aVA+u)], r=[R(aVA)])
        for u in range(4):
            for tt in range(2):
                e.ds_read("ds_read_b64_tr_b16", V8F + (u * 2 + tt) * 2, 2, aVA + u, 8 * tt, ('v8', u, tt))
        for u in range(4):
            for tt in range(2):
                e.wait_lgkm(('v8', u, tt))
                e.mfma('16h', O8 + (u * 2 + tt) * 4, V8F + (u * 2 + tt) * 2, P8, cin=(0 if j == 0 else None))
    qk8(0)
    dmaItem(6)
    for j in range(8):
        e.wait_lgkm()
        if j < 7: e.wait_vm(('K', j + 1))
        e.wait_vm(('V', j))
        if j == 6: e.wait_vm('wo')
        if j == 6: stamp(e, 25)
        e.barrier()
        stamp(e, 12 + j)
        if 2 * j + 7 < 16: dmaItem(2 * j + 7)
        if j == 5: stamp(e, 23)
        pv8(j)
        if j < 7: qk8(j + 1)
        if j == 5: stamp(e, 24)
        if 2 * j + 8 < 16: dmaItem(2 * j + 8)
        if j == 4:
            e.salu("s_lshr_b32 s33, s2, 1"); e.salu(f"s_mul_i32 s33, s33, {32*1152}")
            e.salu("s_and_b32 s36, s2, 1"); e.salu("s_mul_i32 s36, s36, 576"); e.salu("s_add_u32 s33, s33, s36")
            e.salu(f"s_sub_u32 s58, {4096*1152}, s33")
            e.salu("s_add_u32 s56, s56, s33"); e.salu("s_addc_u32 s57, s57, 0"); e.salu("s_and_b32 s57, s57, 0xffff")
            e.salu("s_mov_b32 s59, 0x00020000")
            for i in range(5):
                e.salu("s_mul_i32 s33, s37, 5"); e.salu(f"s_add_u32 s33, s33, {i}"); e.salu("s_min_u32 s33, s33, 17")
                e.salu("s_lshl_b32 s36, s33, 6", w=['s36'])
                e.valu("v_add_u32 v2, s36, v1", w=['v2'], r=['v1', 's36'])
                e.valu("v_mul_u32_u24 v3, 0x1c72, v2", w=['v3'], r=['v2'])
                e.valu("v_lshrrev_b32 v3, 18, v3", w=['v3'], r=['v3'])
                e.valu("v_mul_u32_u24 v4, 36, v3", w=['v4'], r=['v3'])
                e.valu("v_sub_u32 v4, v2, v4", w=['v4'], r=['v2', 'v4'])
                e.valu("v_lshlrev_b32 v4, 4, v4", w=['v4'], r=['v4'])
                e.valu("v_mul_u32_u24 v3, 1152, v3", w=['v3'], r=['v3'])
                e.valu("v_add_u32 v3, v3, v4", w=['v3'], r=['v3', 'v4'])
                e.salu("s_lshl_b32 s33, s33, 10"); e.salu(f"s_add_u32 m0, s33, {6*REG}", w=['m0'])
                e.dma(3, 56, None, 'wo')
        if j == 6:
            e.valu("v_lshrrev_b32 v2, 4, v1", w=['v2'], r=['v1'])
            e.valu("v_bfe_u32 v3, v1, 2, 2", w=['v3'], r=['v1'])
            e.valu("v_lshlrev_b32 v2, 3, v2", w=['v2'], r=['v2'])
            e.valu("v_add_u32 v2, v2, v3", w=['v2'], r=['v2', 'v3'])
            e.valu("v_mul_u32_u24 v2, 576, v2", w=['v2'], r=['v2'])
            e.valu("v_and_b32 v3, 3, v1", w=['v3'], r=['v1'])
            e.valu("v_lshlrev_b32 v3, 3, v3", w=['v3'], r=['v3'])
            e.valu("v_add_u32 v2, v2, v3", w=['v2'], r=['v2', 'v3'])
            e.valu(f"v_add_u32 v2, {6*REG}, v2", w=['v2'], r=['v2'])
            WT = 140
            for i in range(5):
                e.salu(f"s_add_u32 s33, s37, {4*i}"); e.salu("s_min_u32 s33, s33, 17")
                e.salu("s_lshl_b32 s36, s33, 5", w=['s36'])
                e.valu("v_add_u32 v3, s36, v2", w=['v3'], r=['v2', 's36'])
                for part in range(2):
                    e.ds_read("ds_read_b64_tr_b16", WT + i * 4 + part * 2, 2, 3, part * 4 * 576, ('wt', i))
            e.salu("s_mov_b32 s45, s28"); e.salu("s_and_b32 s49, s29, 0xffff"); e.salu("s_mov_b32 s48, s28")
            e.salu(f"s_mov_b32 s50, {WOF0 + WOFSZ}"); e.salu("s_mov_b32 s51, 0x00020000")
            for i in range(5):
                e.salu(f"s_add_u32 s33, s37, {4*i}"); e.salu("s_min_u32 s33, s33, 17")
                e.salu("s_lshr_b32 s36, s2, 1"); e.salu("s_mul_i32 s36, s36, 36"); e.salu("s_add_u32 s33, s33, s36")
                e.salu("s_and_b32 s36, s2, 1"); e.salu("s_mul_i32 s36, s36, 18"); e.salu("s_add_u32 s33, s33, s36")
                e.salu("s_lshl_b32 s33, s33, 10"); e.salu(f"s_add_u32 s33, s33, {WOF0}", w=['s33'])
                e.wait_lgkm(('wt', i))
                e.bstore(WT + i * 4, 4, 8, 48, 33, 0, 'wst')
    e.valu(f"v_mov_b32 v{vT1}, v{vL}", w=[R(vT1)], r=[R(vL)])
    e.ins(f"v_permlane16_swap_b32 v{vL}, v{vT1}", 'perm', w=[R(vL), R(vT1)], r=[R(vL), R(vT1)])
    e.valu(f"v_add_f32 v{vL}, v{vL}, v{vT1}", w=[R(vL)], r=[R(vL), R(vT1)])
    e.valu(f"v_mov_b32 v{vT1}, v{vL}", w=[R(vT1)], r=[R(vL)])
    e.ins(f"v_permlane32_swap_b32 v{vL}, v{vT1}", 'perm', w=[R(vL), R(vT1)], r=[R(vL), R(vT1)])
    e.valu(f"v_add_f32 v{vL}, v{vL}, v{vT1}", w=[R(vL)], r=[R(vL), R(vT1)])
    OX = 8 * REG; MX = 0
    e.salu("s_lshl_b32 s33, s37, 13", w=['s33'])
    e.valu(f"v_add_u32 v2, {OX}, v8", w=['v2'], r=['v8'])
    e.valu("v_add_u32 v3, s33, v2", w=['v3'], r=['v2', 's33'])
    for T in range(8):
        e.ds_write("ds_write_b128", 3, O8 + T * 4, 4, T * 1024)
    e.valu("v_lshrrev_b32 v4, 1, v8", w=['v4'], r=['v8'])
    e.salu("s_lshl_b32 s33, s37, 9", w=['s33'])
    e.valu("v_add_u32 v5, s33, v4", w=['v5'], r=['v4', 's33'])
    e.ds_write("ds_write_b64", 5, vM, 2, MX)
    e.wait_lgkm()
    e.barrier()
    stamp(e, 20)
    ML = 128; OP = 136
    for a2 in range(4):
        e.ds_read("ds_read_b64", ML + a2 * 2, 2, 4, MX + a2 * 512, 'ml')
    e.salu("s_lshl_b32 s33, s37, 11", w=['s33'])
    e.valu("v_add_u32 v3, s33, v2", w=['v3'], r=['v2', 's33'])
    for a2 in range(4):
        for tt in range(2):
            e.ds_read("ds_read_b128", OP + (a2 * 2 + tt) * 4, 4, 3, a2 * 8192 + tt * 1024, 'op')
    e.wait_lgkm('ml')
    e.valu(f"v_max3_f32 v{vM}, v{ML}, v{ML+2}, v{ML+4}", w=[R(vM)], r=[R(ML), R(ML+2), R(ML+4)])
    e.valu(f"v_max_f32 v{vM}, v{vM}, v{ML+6}", w=[R(vM)], r=[R(vM), R(ML+6)])
    for a2 in range(4):
        e.valu(f"v_sub_f32 v{ML+2*a2}, v{ML+2*a2}, v{vM}", w=[R(ML+2*a2)], r=[R(ML+2*a2), R(vM)])
        e.valu(f"v_mul_f32 v{ML+2*a2}, s34, v{ML+2*a2}", w=[R(ML+2*a2)], r=[R(ML+2*a2), 's34'])
    for a2 in range(4):
        e.trans(f"v_exp_f32 v{ML+2*a2}, v{ML+2*a2}", w=[R(ML+2*a2)], r=[R(ML+2*a2)])
    e.valu(f"v_mul_f32 v{vL}, v{ML}, v{ML+1}", w=[R(vL)], r=[R(ML), R(ML+1)])
    for a2 in range(1, 4):
        e.valu(f"v_fma_f32 v{vL}, v{ML+2*a2}, v{ML+2*a2+1}, v{vL}", w=[R(vL)], r=[R(ML+2*a2), R(ML+2*a2+1), R(vL)])
    e.trans(f"v_rcp_f32 v{vAL}, v{vL}", w=[R(vAL)], r=[R(vL)])
    for a2 in range(4):
        e.valu(f"v_mul_f32 v{ML+2*a2}, v{ML+2*a2}, v{vAL}", w=[R(ML+2*a2)], r=[R(ML+2*a2), R(vAL)])
    e.wait_lgkm('op')
    for k in range(8):
        e.valu(f"v_mul_f32 v{OP+k}, v{OP+k}, v{ML}", w=[R(OP+k)], r=[R(OP+k), R(ML)])
        for a2 in range(1, 4):
            e.valu(f"v_fma_f32 v{OP+k}, v{OP+a2*8+k}, v{ML+2*a2}, v{OP+k}", w=[R(OP+k)], r=[R(OP+a2*8+k), R(ML+2*a2), R(OP+k)])
    for jj in range(4):
        e.valu(f"v_cvt_pk_bf16_f32 v{Q8+jj}, v{OP+2*jj}, v{OP+2*jj+1}", w=[R(Q8+jj)], r=[R(OP+2*jj), R(OP+2*jj+1)])
    e.salu("s_mul_i32 s33, s31, 9"); e.salu("s_add_u32 s33, s33, 8"); e.salu("s_lshl_b32 s33, s33, 7")
    e.salu("s_lshl_b32 s36, s30, 2"); e.salu("s_add_u32 s33, s33, s36"); e.salu("s_add_u32 s33, s33, s37")
    e.salu("s_lshl_b32 s33, s33, 10", w=['s33'])
    e.bstore(Q8, 4, 8, 24, 33, 0)
    if STAMP: e.wait_vm()
    stamp(e, 21); stamp(e, 22)
    stamp_out(e, 26)
    e.raw(f"{name}_done:")
    e.raw("    s_endpgm")
    return e.text(), 256
```

```python
from em import *
from k2f import WOF0, WOFSZ
import math, struct
CSC = 128 ** -0.5 * math.log2(math.e)
def f32bits(x): return struct.unpack('<I', struct.pack('<f', x))[0]

REG = 16384
XR0 = 49152; XSZ = 18432
WQ0 = 114688; WSZ = 16384
QX0 = 131072
X80 = 114688
STGREG = {3: 32, 4: 40, 5: 48, 6: 56, 7: 112, 8: 120}
NEARLY = 3
THR = 8.0 / CSC
ITEMS = [('K', 0), ('K', 1), ('V', 0), ('K', 2), ('V', 1), ('K', 3), ('V', 2), ('K', 4), ('V', 3), ('K', 5),
         ('V', 4), ('K', 6), ('V', 5), ('K', 7), ('V', 6), ('V', 7)]
def region(kind, j): return (ITEMS.index((kind, j)) % 10) * REG
STAMP = False
STAGGER = False
KVT = 5
LEAD = 16
AUXPRIO = True
STGV = False
PRIO = False
def stamp(e, idx):
    if not STAMP: return
    e.ins("s_memtime s[40:41]", 'salu', w=['s40', 's41'])
    e.ins("s_waitcnt lgkmcnt(0)", 'wait'); e.lgkm = []
    e.salu(f"s_mov_b32 s{64+idx}, s40", w=[f's{64+idx}'])
def stamp_out(e, n):
    if not STAMP: return
    e.salu("s_mov_b32 s44, s28"); e.salu("s_and_b32 s45, s29, 0xffff"); e.salu("s_mov_b32 s46, 0x8000000"); e.salu("s_mov_b32 s47, 0x00020000")
    e.salu("s_lshl_b32 s42, s2, 3"); e.salu("s_add_u32 s42, s42, s32")
    e.salu("s_lshl_b32 s42, s42, 7"); e.salu("s_add_u32 s42, s42, 0x4000000", w=['s42'])
    e.valu("v_mov_b32 v3, 0", w=['v3'])
    for i in range(n):
        e.valu(f"v_mov_b32 v4, s{64+i}", w=['v4'], r=[f's{64+i}'])
        e.bstore(4, 1, 3, 44, 42, 4 * i)
        e.ins("s_waitcnt vmcnt(0)", 'wait'); e.vm = []

R = lambda x: f'v{x}'
KA, VA = 10, 18
vM, vL, vMC, vAL, vT0, vT1, vL2 = 22, 23, 24, 25, 26, 27, 9
vKA0, vVA0, vKO, vVO = 28, 29, 30, 31
QF, OA, SB, KF, VF = 32, 64, 128, 192, 216
Q8, O8, S8, P8, K8F, V8F = 32, 64, 96, 100, 104, 120
vXO, vWQO = 100, 101
def PBr(j, ks): return SB + (j & 1) * 32 + (ks >> 1) * 16 + (ks & 1) * 8

def gen_k1(name):
    e = Em()
    nlab = [0]
    def newlab(tag):
        nlab[0] += 1
        return f"{name}_{tag}{nlab[0]}"
    e.raw(f".globl {name}\n.p2align 8\n.type {name},@function\n{name}:")
    e.salu("s_cmp_ge_u32 s2, 256", r=['s2'])
    e.salu(f"s_cbranch_scc1 {name}_done")
    e.salu("s_load_dwordx4 s[4:7], s[0:1], 0", w=ss(4, 4))
    e.salu("s_load_dwordx4 s[24:27], s[0:1], 16", w=ss(24, 4))
    e.salu("s_load_dwordx2 s[28:29], s[0:1], 56", w=ss(28, 2))
    e.salu("s_load_dwordx2 s[56:57], s[0:1], 32", w=ss(56, 2))
    e.salu("s_and_b32 s30, s2, 7"); e.salu("s_lshl_b32 s30, s30, 2")
    e.salu("s_lshr_b32 s31, s2, 3"); e.salu("s_and_b32 s31, s31, 3")
    e.salu("s_add_u32 s30, s30, s31")
    e.salu("s_lshr_b32 s31, s2, 5")
    e.salu("s_and_b32 s60, s31, 1")
    e.valu("v_and_b32 v1, 63, v0", w=['v1'], r=['v0'])
    e.valu("v_lshrrev_b32 v2, 6, v0", w=['v2'], r=['v0'])
    e.ins("v_readfirstlane_b32 s32, v2", 'rfl', w=['s32'], r=['v2'])
    e.valu("v_lshrrev_b32 v2, 4, v1", w=['v2'], r=['v1'])
    e.valu("v_and_b32 v3, 15, v1", w=['v3'], r=['v1'])
    e.salu("s_lshl_b32 s35, s32, 10", w=['s35'], r=['s32'])
    e.salu("s_lshl_b32 s33, s32, 2", w=['s33'])
    e.valu("v_add_u32 v4, s33, v2", w=['v4'], r=['v2', 's33'])
    e.salu("s_and_b32 s33, s32, 3"); e.salu("s_lshl_b32 s33, s33, 2", w=['s33'])
    e.valu("v_add_u32 v7, s33, v2", w=['v7'], r=['v2', 's33'])
    e.valu("v_xor_b32 v5, v7, v3", w=['v5'], r=['v7', 'v3'])
    e.valu("v_lshlrev_b32 v5, 4, v5", w=['v5'], r=['v5'])
    e.valu("v_lshlrev_b32 v6, 8, v7", w=['v6'], r=['v7'])
    e.valu(f"v_add_u32 v{vKO}, v6, v5", w=[R(vKO)], r=['v6', 'v5'])
    e.salu("s_and_b32 s33, s32, 1"); e.salu("s_lshl_b32 s33, s33, 1", w=['s33'])
    e.valu("v_lshlrev_b32 v5, 2, v2", w=['v5'], r=['v2'])
    e.valu("v_or_b32 v5, s33, v5", w=['v5'], r=['v5', 's33'])
    e.valu("v_xor_b32 v5, v5, v3", w=['v5'], r=['v5', 'v3'])
    e.valu("v_lshlrev_b32 v5, 4, v5", w=['v5'], r=['v5'])
    e.valu(f"v_add_u32 v{vVO}, v6, v5", w=[R(vVO)], r=['v6', 'v5'])
    e.salu("s_and_b32 s44, s32, 3"); e.salu("s_lshl_b32 s44, s44, 10", w=['s44'])
    e.salu("s_lshr_b32 s38, s32, 2", w=['s38'])
    e.valu("v_lshlrev_b32 v5, 2, v2", w=['v5'], r=['v2'])
    e.valu("v_xor_b32 v5, v5, v3", w=['v5'], r=['v5', 'v3'])
    e.valu("v_lshlrev_b32 v5, 4, v5", w=['v5'], r=['v5'])
    e.valu("v_lshlrev_b32 v6, 13, v4", w=['v6'], r=['v4'])
    e.valu(f"v_add_u32 v{vWQO}, v6, v5", w=[R(vWQO)], r=['v6', 'v5'])
    e.salu("s_and_b32 s33, s32, 1"); e.salu("s_lshl_b32 s33, s33, 2", w=['s33'])
    e.valu("v_or_b32 v5, s33, v2", w=['v5'], r=['v2', 's33'])
    e.valu("v_and_b32 v6, 7, v1", w=['v6'], r=['v1'])
    e.valu("v_xor_b32 v5, v5, v6", w=['v5'], r=['v5', 'v6'])
    e.valu("v_lshlrev_b32 v5, 4, v5", w=['v5'], r=['v5'])
    e.valu("v_lshrrev_b32 v6, 3, v1", w=['v6'], r=['v1'])
    e.salu("s_lshl_b32 s33, s32, 3", w=['s33'])
    e.valu("v_add_u32 v6, s33, v6", w=['v6'], r=['v6', 's33'])
    e.valu("v_mul_u32_u24 v6, 1152, v6", w=['v6'], r=['v6'])
    e.valu(f"v_add_u32 v{vXO}, v6, v5", w=[R(vXO)], r=['v6', 'v5'])
    e.salu("s_and_b32 s33, s32, 1"); e.salu("s_lshl_b32 s39, s33, 3"); e.salu("s_add_u32 s39, s39, 128")
    e.salu("s_lshl_b32 s43, s32, 3"); e.salu("s_sub_u32 s39, s39, s43"); e.salu("s_mul_i32 s39, s39, 1152")
    e.salu("s_add_u32 s43, s33, 16"); e.salu("s_lshl_b32 s43, s43, 10", w=['s43'])
    e.ins("s_waitcnt lgkmcnt(0)", 'wait')
    stamp(e, 0)
    e.salu("s_mul_i32 s33, s31, 165888")
    e.salu("s_add_u32 s8, s4, s33"); e.salu("s_addc_u32 s9, s5, 0"); e.salu("s_and_b32 s9, s9, 0xffff")
    e.salu("s_mov_b32 s10, 165888"); e.salu("s_mov_b32 s11, 0x00020000")
    e.salu("s_lshl_b32 s33, s31, 5"); e.salu("s_add_u32 s33, s33, s30"); e.salu("s_lshl_b32 s33, s33, 17")
    e.salu("s_add_u32 s12, s6, s33"); e.salu("s_addc_u32 s13, s7, 0"); e.salu("s_and_b32 s13, s13, 0xffff")
    e.salu("s_mov_b32 s14, 131072"); e.salu("s_mov_b32 s15, 0x00020000")
    e.salu("s_add_u32 s16, s24, s33"); e.salu("s_addc_u32 s17, s25, 0"); e.salu("s_and_b32 s17, s17, 0xffff")
    e.salu("s_mov_b32 s18, 131072"); e.salu("s_mov_b32 s19, 0x00020000")
    e.salu("s_lshl_b32 s33, s30, 8")
    e.salu("s_add_u32 s20, s26, s33"); e.salu("s_addc_u32 s21, s27, 0"); e.salu("s_and_b32 s21, s21, 0xffff")
    e.salu(f"s_sub_u32 s22, {576*8192}, s33"); e.salu("s_mov_b32 s23, 0x00020000")
    def issueA(t):
        sl = t % 3
        for i in range(2):
            e.salu(f"s_mov_b32 s36, {(64*t + 32*i)*8192}", w=['s36'])
            e.salu(f"s_add_u32 m0, s35, {WQ0 + sl*WSZ + i*8192}", w=['m0'], r=['s35'])
            e.dma(vWQO, 20, 36, ('A', t))
        for i in range(2):
            e.salu(f"s_mov_b32 s36, {64*i*1152 + 128*t}", w=['s36'])
            e.salu(f"s_add_u32 m0, s35, {XR0 + sl*XSZ + i*8192}", w=['m0'], r=['s35'])
            e.dma(vXO, 8, 36, ('A', t))
        lab = newlab("xs")
        e.salu("s_cmp_ge_u32 s32, 2"); e.salu(f"s_cbranch_scc1 {lab}")
        e.salu(f"s_add_u32 s36, s39, {128*t}", w=['s36'])
        e.salu(f"s_add_u32 m0, s43, {XR0 + sl*XSZ}", w=['m0'], r=['s43'])
        e.ins(f"buffer_load_dwordx4 v{vXO}, s[8:11], s36 offen offset:0 lds", 'dma', [], ['m0'])
        e.raw(f"{lab}:")
        e.vm.append(('Ax', t))
    def waitA(t, branchy=False):
        idx = [i for i, tg in enumerate(e.vm) if tg == ('Ax', t)][-1]
        later = [tg for tg in e.vm[idx + 1:] if tg[0] != 'Ax']
        if branchy:
            la, lb = newlab("wa"), newlab("wb")
            laterA = [tg for tg in later if tg[0] == 'A']
            e.salu("s_cmp_eq_u32 s38, 0"); e.salu(f"s_cbranch_scc1 {la}")
            if STAGGER:
                e.salu("s_cmp_eq_u32 s60, 1"); e.salu(f"s_cbranch_scc1 {la}")
            e.ins(f"s_waitcnt vmcnt({len(later)})", 'wait')
            e.salu(f"s_branch {lb}")
            e.raw(f"{la}:")
            e.ins(f"s_waitcnt vmcnt({len(laterA)})", 'wait')
            e.raw(f"{lb}:")
        else:
            e.ins(f"s_waitcnt vmcnt({len(later)})", 'wait')
        e.vm = e.vm[idx + 1:]
    def dmaItem(i, track=True):
        kind, j = ITEMS[i]
        base = (i % 10) * REG
        srd = 12 if kind == 'K' else 16
        vo = vKO if kind == 'K' else vVO
        for k in range(4):
            e.salu(f"s_mov_b32 s36, {j*16384 + k*4096}", w=['s36'])
            e.salu(f"s_add_u32 m0, s44, {base + k*4096}", w=['m0'], r=['s44'])
            e.dma(vo, srd, 36, (kind, j), nt=True)
            if not track: e.vm.pop()
    def dma_shared(items, only_g0):
        lab = newlab("dl")
        e.salu("s_cmp_eq_u32 s38, 0"); e.salu(f"s_cbranch_scc1 {lab}")
        if only_g0 and STAGGER:
            e.salu("s_cmp_eq_u32 s60, 1"); e.salu(f"s_cbranch_scc1 {lab}")
        for i in items: dmaItem(i)
        e.raw(f"{lab}:")
    def by_group(f0, f1):
        la, lb = newlab("b0"), newlab("b1")
        e.salu("s_cmp_eq_u32 s60, 1"); e.salu(f"s_cbranch_scc1 {la}")
        h = list(e.hist)
        f0()
        e.salu(f"s_branch {lb}")
        e.raw(f"{la}:")
        e.hist = list(h)
        vmsave = list(e.vm); lg = list(e.lgkm)
        f1()
        e.vm = vmsave
        e.raw(f"{lb}:")
        e.hist = list(h)
    def dump(items):
        e.valu("v_lshlrev_b32 v4, 4, v1", w=['v4'], r=['v1'])
        e.valu("v_add_u32 v4, s35, v4", w=['v4'], r=['v4', 's35'])
        for i in items:
            e.valu(f"v_add_u32 v5, {(i % 10) * REG}, v4", w=['v5'], r=['v4'])
            for k in range(2):
                e.ds_write("ds_write_b128", 5, STGREG[i] + 4 * k, 4, k * 8192)
        e.wait_lgkm()
    if STAGGER:
        lab = newlab("de")
        e.salu("s_cmp_eq_u32 s60, 0"); e.salu(f"s_cbranch_scc1 {lab}")
        e.salu("s_cmp_eq_u32 s38, 0"); e.salu(f"s_cbranch_scc1 {lab}")
        for i in range(NEARLY): dmaItem(i, track=False)
        e.raw(f"{lab}:")
    issueA(0); issueA(1); issueA(2)
    e.salu("s_mov_b32 s24, s28"); e.salu("s_and_b32 s25, s29, 0xffff")
    e.salu(f"s_mov_b32 s26, {72*128*1024}"); e.salu("s_mov_b32 s27, 0x00020000")
    e.salu(f"s_mov_b32 s34, {f32bits(CSC):#x}")
    e.salu("s_and_b32 s37, s32, 3", r=['s32'])
    e.salu("s_lshr_b32 s38, s32, 2", r=['s32'])
    PX, PW = 102, 108
    e.valu("v_and_b32 v4, 31, v1", w=['v4'], r=['v1'])
    e.valu("v_lshrrev_b32 v5, 5, v1", w=['v5'], r=['v1'])
    e.salu("s_lshl_b32 s33, s37, 5", w=['s33'])
    e.valu("v_add_u32 v6, s33, v4", w=['v6'], r=['v4', 's33'])
    e.valu("v_bfe_u32 v7, v6, 1, 3", w=['v7'], r=['v6'])
    e.valu("v_xor_b32 v7, v7, v5", w=['v7'], r=['v7', 'v5'])
    e.valu("v_lshlrev_b32 v7, 4, v7", w=['v7'], r=['v7'])
    e.valu("v_lshlrev_b32 v6, 7, v6", w=['v6'], r=['v6'])
    e.valu("v_add_u32 v6, v6, v7", w=['v6'], r=['v6', 'v7'])
    e.valu(f"v_add_u32 v{PX}, {XR0}, v6", w=[R(PX)], r=['v6'])
    for u in range(1, 4):
        e.valu(f"v_xor_b32 v{PX+u}, {u<<5}, v{PX}", w=[R(PX+u)], r=[R(PX)])
    e.valu("v_bfe_u32 v7, v3, 1, 3", w=['v7'], r=['v3'])
    e.valu("v_xor_b32 v7, v7, v2", w=['v7'], r=['v7', 'v2'])
    e.valu("v_lshlrev_b32 v7, 4, v7", w=['v7'], r=['v7'])
    e.valu("v_lshlrev_b32 v6, 7, v3", w=['v6'], r=['v3'])
    e.valu("v_add_u32 v6, v6, v7", w=['v6'], r=['v6', 'v7'])
    e.valu(f"v_add_u32 v{PX+4}, {XR0 + 128*128}, v6", w=[R(PX+4)], r=['v6'])
    e.valu(f"v_xor_b32 v{PX+5}, 64, v{PX+4}", w=[R(PX+5)], r=[R(PX+4)])
    e.valu("v_bfe_u32 v6, v1, 4, 1", w=['v6'], r=['v1'])
    e.valu("v_lshlrev_b32 v6, 1, v6", w=['v6'], r=['v6'])
    e.valu("v_and_b32 v7, 1, v1", w=['v7'], r=['v1'])
    e.valu("v_or_b32 v6, v6, v7", w=['v6'], r=['v6', 'v7'])
    e.valu("v_bfe_u32 v7, v1, 2, 2", w=['v7'], r=['v1'])
    e.valu("v_lshlrev_b32 v8, 2, v7", w=['v8'], r=['v7'])
    e.valu("v_xor_b32 v6, v6, v8", w=['v6'], r=['v6', 'v8'])
    e.valu("v_bfe_u32 v8, v1, 1, 1", w=['v8'], r=['v1'])
    e.valu("v_lshlrev_b32 v8, 3, v8", w=['v8'], r=['v8'])
    e.valu(f"v_lshlrev_b32 v{vT0}, 3, v5", w=[R(vT0)], r=['v5'])
    e.valu(f"v_add_u32 v{vT0}, v{vT0}, v7", w=[R(vT0)], r=[R(vT0), 'v7'])
    e.valu(f"v_lshlrev_b32 v{vT0}, 8, v{vT0}", w=[R(vT0)], r=[R(vT0)])
    e.valu(f"v_lshlrev_b32 v{vT1}, 4, v6", w=[R(vT1)], r=['v6'])
    e.valu(f"v_add3_u32 v{vT0}, v{vT0}, v{vT1}, v8", w=[R(vT0)], r=[R(vT0), R(vT1), 'v8'])
    e.valu(f"v_add_u32 v{vT0}, {WQ0}, v{vT0}", w=[R(vT0)], r=[R(vT0)])
    e.salu("s_lshl_b32 s33, s38, 7", w=['s33'])
    e.valu(f"v_xor_b32 v{PW}, s33, v{vT0}", w=[R(PW)], r=[R(vT0), 's33'])
    e.valu(f"v_xor_b32 v{PW+1}, 64, v{PW}", w=[R(PW+1)], r=[R(PW)])
    e.valu("v_and_b32 v6, 3, v1", w=['v6'], r=['v1'])
    e.salu("s_lshr_b32 s33, s32, 1"); e.salu("s_lshl_b32 s33, s33, 2", w=['s33'])
    e.valu(f"v_add_u32 v{vT0}, s33, v6", w=[R(vT0)], r=['v6', 's33'])
    e.valu("v_lshlrev_b32 v8, 2, v7", w=['v8'], r=['v7'])
    e.valu(f"v_xor_b32 v{vT0}, v{vT0}, v8", w=[R(vT0)], r=[R(vT0), 'v8'])
    e.valu(f"v_lshlrev_b32 v{vT0}, 4, v{vT0}", w=[R(vT0)], r=[R(vT0)])
    e.valu(f"v_lshlrev_b32 v{vT1}, 3, v2", w=[R(vT1)], r=['v2'])
    e.valu(f"v_add_u32 v{vT1}, v{vT1}, v7", w=[R(vT1)], r=[R(vT1), 'v7'])
    e.valu(f"v_lshlrev_b32 v{vT1}, 8, v{vT1}", w=[R(vT1)], r=[R(vT1)])
    e.salu("s_and_b32 s33, s32, 1"); e.salu("s_lshl_b32 s33, s33, 3"); e.salu(f"s_add_u32 s33, s33, {WQ0}", w=['s33'])
    e.valu(f"v_add3_u32 v{PW+2}, v{vT0}, v{vT1}, s33", w=[R(PW+2)], r=[R(vT0), R(vT1), 's33'])
    QACC = 64; QA8 = 96
    def setregs(t):
        base = 128 + (t & 1) * 64
        return base, base + 16, base + 48, base + 56
    def readsA(t):
        sl = t % 3
        XF, WF, X8F, W8F = setregs(t)
        ops = []
        def rd(*a): ops.append(lambda: e.ds_read(*a))
        for u in range(4):
            rd("ds_read_b128", XF + u * 4, 4, PX + u, sl * XSZ, ('fa', t))
            for tt in range(2):
                for part in range(2):
                    rd("ds_read_b64_tr_b16", WF + (u * 2 + tt) * 4 + part * 2, 2, PW + tt,
                       sl * WSZ + (16 * u + 4 * part) * 256, ('fa', t))
        for u2 in range(2):
            rd("ds_read_b128", X8F + u2 * 4, 4, PX + 4 + u2, sl * XSZ, ('fa', t))
            for part in range(2):
                rd("ds_read_b64_tr_b16", W8F + u2 * 4 + part * 2, 2, PW + 2,
                   sl * WSZ + (32 * u2 + 4 * part) * 256, ('fa', t))
        return ops
    waitA(0)
    e.barrier()
    for o in readsA(0): o()
    for t in range(9):
        e.wait_lgkm()
        if t + 1 < 9:
            waitA(t + 1, branchy=(t + 1 >= KVT + 2))
        e.barrier()
        stamp(e, 1 + t)
        if t + 3 < 9:
            issueA(t + 3)
        ops = readsA(t + 1) if t + 1 < 9 else []
        XF, WF, X8F, W8F = setregs(t)
        k = 0
        for u in range(4):
            for tt in range(2):
                e.mfma('32', QACC + tt * 16, WF + (u * 2 + tt) * 4, XF + u * 4, cin=(0 if (t == 0 and u == 0) else None))
                for o in ops[k:k + 3]: o()
                k += 3
        for u2 in range(2):
            e.mfma('16', QA8, W8F + u2 * 4, X8F + u2 * 4, cin=(0 if (t == 0 and u2 == 0) else None))
            for o in ops[k:k + 1]: o()
            k += 1
        if t == KVT: dma_shared([0], True)
        if t == KVT + 1: dma_shared([1], True)
        if t == KVT + 2: dma_shared([2], True)
        if t == 8: dma_shared([3], False)
    e.valu("v_and_b32 v4, 31, v1", w=['v4'], r=['v1'])
    e.valu("v_lshrrev_b32 v5, 5, v1", w=['v5'], r=['v1'])
    e.valu("v_and_b32 v6, 15, v4", w=['v6'], r=['v4'])
    e.valu("v_xor_b32 v6, v6, v5", w=['v6'], r=['v6', 'v5'])
    e.valu("v_lshlrev_b32 v6, 4, v6", w=['v6'], r=['v6'])
    e.valu("v_lshlrev_b32 v2, 8, v4", w=['v2'], r=['v4'])
    e.valu(f"v_add_u32 v{vKA0}, v6, v2", w=[R(vKA0)], r=['v6', 'v2'])
    e.valu("v_bfe_u32 v6, v1, 4, 1", w=['v6'], r=['v1'])
    e.valu("v_lshlrev_b32 v6, 1, v6", w=['v6'], r=['v6'])
    e.valu("v_and_b32 v2, 1, v1", w=['v2'], r=['v1'])
    e.valu("v_or_b32 v6, v6, v2", w=['v6'], r=['v6', 'v2'])
    e.valu("v_bfe_u32 v2, v1, 2, 2", w=['v2'], r=['v1'])
    e.valu("v_lshlrev_b32 v3, 2, v2", w=['v3'], r=['v2'])
    e.valu("v_xor_b32 v6, v6, v3", w=['v6'], r=['v6', 'v3'])
    e.valu("v_lshlrev_b32 v3, 1, v5", w=['v3'], r=['v5'])
    e.valu("v_xor_b32 v6, v6, v3", w=['v6'], r=['v6', 'v3'])
    e.valu("v_lshlrev_b32 v6, 4, v6", w=['v6'], r=['v6'])
    e.valu("v_lshlrev_b32 v3, 2, v5", w=['v3'], r=['v5'])
    e.valu("v_add_u32 v3, v3, v2", w=['v3'], r=['v3', 'v2'])
    e.valu("v_lshlrev_b32 v3, 8, v3", w=['v3'], r=['v3'])
    e.valu("v_bfe_u32 v2, v1, 1, 1", w=['v2'], r=['v1'])
    e.valu("v_lshlrev_b32 v2, 3, v2", w=['v2'], r=['v2'])
    e.valu(f"v_add3_u32 v{vVA0}, v3, v6, v2", w=[R(vVA0)], r=['v3', 'v6', 'v2'])
    TQ = 192
    for tt in range(2):
        for ip in range(2):
            for jj in range(4):
                a = QACC + tt * 16 + 8 * ip + 2 * jj
                d = TQ + (2 * tt + ip) * 4 + jj
                e.valu(f"v_cvt_pk_bf16_f32 v{d}, v{a}, v{a+1}", w=[R(d)], r=[R(a), R(a+1)])
    e.valu(f"v_cvt_pk_bf16_f32 v{TQ+16}, v{QA8}, v{QA8+1}", w=[R(TQ+16)], r=[R(QA8), R(QA8+1)])
    e.valu(f"v_cvt_pk_bf16_f32 v{TQ+17}, v{QA8+2}, v{QA8+3}", w=[R(TQ+17)], r=[R(QA8+2), R(QA8+3)])
    e.valu("v_lshlrev_b32 v8, 4, v1", w=['v8'], r=['v1'])
    e.salu("s_lshl_b32 s33, s37, 13"); e.salu(f"s_add_u32 s33, s33, {QX0}", w=['s33'])
    e.valu("v_add_u32 v7, s33, v8", w=['v7'], r=['v8', 's33'])
    e.salu("s_lshl_b32 s33, s38, 12", w=['s33'])
    e.valu("v_add_u32 v4, s33, v7", w=['v4'], r=['v7', 's33'])
    for k in range(4):
        e.ds_write("ds_write_b128", 4, TQ + k * 4, 4, k * 1024)
    e.salu("s_lshr_b32 s33, s32, 1"); e.salu("s_lshl_b32 s33, s33, 10")
    e.salu("s_and_b32 s36, s32, 1"); e.salu("s_lshl_b32 s36, s36, 3"); e.salu("s_add_u32 s33, s33, s36")
    e.salu(f"s_add_u32 s33, s33, {X80}", w=['s33'])
    e.valu("v_add_u32 v5, s33, v8", w=['v5'], r=['v8', 's33'])
    e.ds_write("ds_write_b64", 5, TQ + 16, 2, 0)
    e.salu(f"s_mov_b32 s61, {f32bits(THR):#x}")
    e.wait_lgkm()
    e.barrier()
    stamp(e, 10)
    labAux = newlab("AUX")
    e.salu("s_cmp_eq_u32 s38, 1"); e.salu(f"s_cbranch_scc1 {labAux}")
    vm0 = list(e.vm); h0 = list(e.hist)
    def V_(ops, t, w, r): ops.append(lambda: e.valu(t, w=w, r=r))
    def T_(ops, t, w, r): ops.append(lambda: e.trans(t, w=w, r=r))
    def lazy(ops, M, L, L2, MC, AL, t0, t1, O, nO):
        V_(ops, f"v_max_f32 v{t0}, v{t0}, v{t1}", [R(t0)], [R(t0), R(t1)])
        V_(ops, f"v_sub_f32 v{t1}, v{t0}, v{M}", [R(t1)], [R(M), R(t0)])
        def br():
            lab = newlab("lz")
            e.valu(f"v_cmp_lt_f32 vcc, s61, v{t1}", w=['vcc'], r=[R(t1), 's61'])
            e.nop(5)
            e.salu(f"s_cbranch_vccz {lab}")
            h = list(e.hist)
            e.valu(f"v_max_f32 v{t0}, v{t0}, v{M}", w=[R(t0)], r=[R(t0), R(M)])
            e.valu(f"v_sub_f32 v{t1}, v{M}, v{t0}", w=[R(t1)], r=[R(M), R(t0)])
            e.valu(f"v_mul_f32 v{t1}, s34, v{t1}", w=[R(t1)], r=[R(t1), 's34'])
            e.trans(f"v_exp_f32 v{AL}, v{t1}", w=[R(AL)], r=[R(t1)])
            e.valu(f"v_mov_b32 v{M}, v{t0}", w=[R(M)], r=[R(t0)])
            e.valu(f"v_mul_f32 v{MC}, s34, v{t0}", w=[R(MC)], r=[R(t0), 's34'])
            e.valu(f"v_mul_f32 v{L}, v{L}, v{AL}", w=[R(L)], r=[R(L), R(AL)])
            if L2 is not None:
                e.valu(f"v_mul_f32 v{L2}, v{L2}, v{AL}", w=[R(L2)], r=[R(L2), R(AL)])
            e.nop(12)
            for k in range(nO):
                e.valu(f"v_mul_f32 v{O+k}, v{O+k}, v{AL}", w=[R(O+k)], r=[R(O+k), R(AL)])
            e.nop(2)
            e.raw(f"{lab}:")
            e.hist = h
        ops.append(br)
    def run(mfs, after, fill, lead=0):
        n = len(mfs); d = 0
        while d < min(lead, len(fill)):
            fill[d](); d += 1
        for k in range(n):
            mfs[k]()
            for r_ in after[k]: r_()
            tgt = lead + ((len(fill) - lead) * (k + 1)) // n
            while d < tgt:
                fill[d](); d += 1
        while d < len(fill):
            fill[d](); d += 1
    e.vm = []
    for s in range(8):
        e.ds_read("ds_read_b128", QF + s * 4, 4, 7, s * 1024, 'q')
    e.wait_lgkm()
    e.barrier()
    stamp(e, 11)
    RS = 6
    def qk_ops(j):
        sb = SB + (j & 1) * 32
        reg = region('K', j)
        pre = []
        V_(pre, f"v_add_u32 v{KA}, {reg}, v{vKA0}", [R(KA)], [R(vKA0)])
        for s in range(1, 8):
            V_(pre, f"v_xor_b32 v{KA+s}, {s<<5}, v{KA}", [R(KA+s)], [R(KA)])
        rds, mfs = [], []
        for k in range(16):
            kt, s = divmod(k, 8)
            rds.append(lambda k=k, kt=kt, s=s: e.ds_read("ds_read_b128", KF + (k % RS) * 4, 4, KA + s, kt * 8192, ('kf', j, k)))
            def mf(k=k, kt=kt, s=s):
                if k % 2 == 0: e.wait_lgkm(('kf', j, k + 1))
                e.mfma('32', sb + kt * 16, KF + (k % RS) * 4, QF + s * 4, cin=(0 if s == 0 else None))
            mfs.append(mf)
        return pre, rds, mfs
    def pv_ops(j):
        reg = region('V', j)
        pre = []
        V_(pre, f"v_add_u32 v{VA}, {reg}, v{vVA0}", [R(VA)], [R(vVA0)])
        for dt in range(1, 4):
            V_(pre, f"v_xor_b32 v{VA+dt}, {dt<<6}, v{VA}", [R(VA+dt)], [R(VA)])
        rds, mfs = [], []
        for k in range(16):
            ks, dt = divmod(k, 4)
            def rd(k=k, ks=ks, dt=dt):
                for part in range(2):
                    e.ds_read("ds_read_b64_tr_b16", VF + (k % RS) * 4 + part * 2, 2, VA + dt, (16 * ks + 8 * part) * 256, ('vf', j, k))
            rds.append(rd)
            def mf(k=k, ks=ks, dt=dt):
                if k % 2 == 0: e.wait_lgkm(('vf', j, k + 1))
                e.mfma('32', OA + dt * 16, VF + (k % RS) * 4, PBr(j, ks), cin=(0 if (j == 0 and ks == 0) else None))
            mfs.append(mf)
        return pre, rds, mfs
    def sm_ops(j):
        sb = SB + (j & 1) * 32
        ops = []
        for half, tt in ((0, vT0), (1, vT1)):
            pass
        A0, A1 = [], []
        for half, tt, L_ in ((0, vT0, A0), (1, vT1, A1)):
            b = sb + 16 * half
            V_(L_, f"v_max3_f32 v{tt}, v{b}, v{b+1}, v{b+2}", [R(tt)], [R(b), R(b+1), R(b+2)])
            for k in range(3, 15, 2):
                V_(L_, f"v_max3_f32 v{tt}, v{tt}, v{b+k}, v{b+k+1}", [R(tt)], [R(tt), R(b+k), R(b+k+1)])
            V_(L_, f"v_max_f32 v{tt}, v{tt}, v{b+15}", [R(tt)], [R(tt), R(b+15)])
        for x, y in zip(A0, A1): ops += [x, y]
        V_(ops, f"v_max_f32 v{vT0}, v{vT0}, v{vT1}", [R(vT0)], [R(vT0), R(vT1)])
        V_(ops, f"v_mov_b32 v{vT1}, v{vT0}", [R(vT1)], [R(vT0)])
        ops.append(lambda: e.ins(f"v_permlane32_swap_b32 v{vT0}, v{vT1}", 'perm', w=[R(vT0), R(vT1)], r=[R(vT0), R(vT1)]))
        if j == 0:
            V_(ops, f"v_max_f32 v{vM}, v{vT0}, v{vT1}", [R(vM)], [R(vT0), R(vT1)])
            V_(ops, f"v_mul_f32 v{vMC}, s34, v{vM}", [R(vMC)], [R(vM), 's34'])
        else:
            lazy(ops, vM, vL, vL2, vMC, vAL, vT0, vT1, OA, 64)
        def expk(ops, ks):
            b = PBr(j, ks)
            for jj in range(8):
                V_(ops, f"v_fma_f32 v{b+jj}, v{b+jj}, s34, -v{vMC}", [R(b+jj)], [R(b+jj), 's34', R(vMC)])
            for jj in range(8):
                T_(ops, f"v_exp_f32 v{b+jj}, v{b+jj}", [R(b+jj)], [R(b+jj)])
            for jj in range(0, 8, 2):
                if j == 0 and ks == 0 and jj == 0:
                    V_(ops, f"v_mov_b32 v{vL}, v{b}", [R(vL)], [R(b)])
                    V_(ops, f"v_mov_b32 v{vL2}, v{b+1}", [R(vL2)], [R(b+1)])
                else:
                    V_(ops, f"v_add_f32 v{vL}, v{vL}, v{b+jj}", [R(vL)], [R(vL), R(b+jj)])
                    V_(ops, f"v_add_f32 v{vL2}, v{vL2}, v{b+jj+1}", [R(vL2)], [R(vL2), R(b+jj+1)])
            for jj in range(0, 8, 2):
                V_(ops, f"v_cvt_pk_bf16_f32 v{b+jj//2}, v{b+jj}, v{b+jj+1}", [R(b+jj//2)], [R(b+jj), R(b+jj+1)])
        expk(ops, 0); expk(ops, 1)
        B = []
        expk(B, 2); expk(B, 3)
        return ops, B
    kpre, krd, kmf = qk_ops(0)
    for o in kpre: o()
    for o in krd[:RS]: o()
    run(kmf, [[krd[k + RS]] if k + RS < 16 else [] for k in range(16)], [])
    for j in range(8):
        e.wait_lgkm()
        if j == 6: stamp(e, 25)
        e.barrier()
        stamp(e, 12 + j)
        vpre, vrd, vmf = pv_ops(j)
        A, B = sm_ops(j)
        if j < 7:
            kpre, krd, kmf = qk_ops(j + 1)
            for o in kpre: o()
            for o in krd[:RS]: o()
            for o in vpre: o()
            after = [[krd[k + RS]] if k + RS < 16 else [vrd[k + RS - 16]] for k in range(16)]
            if j == 5: stamp(e, 23)
            run(kmf, after, A, lead=LEAD)
            if j == 5: stamp(e, 24)
        else:
            for o in vpre: o()
            for o in vrd[:RS]: o()
            for o in A: o()
        nB = len(B); d = 0
        for k in range(16):
            vmf[k]()
            if k + RS < 16: vrd[k + RS]()
            if k < 11:
                tgt = (nB * (k + 1)) // 11
                if k >= 6: tgt = max(tgt, nB // 2)
                if k == 10: tgt = nB
                while d < min(tgt, nB):
                    B[d](); d += 1
    e.barrier()
    stamp(e, 20)
    e.valu(f"v_add_f32 v{vL}, v{vL}, v{vL2}", w=[R(vL)], r=[R(vL), R(vL2)])
    e.valu(f"v_mov_b32 v{vT0}, v{vL}", w=[R(vT0)], r=[R(vL)])
    e.ins(f"v_permlane32_swap_b32 v{vT0}, v{vL}", 'perm', w=[R(vT0), R(vL)], r=[R(vT0), R(vL)])
    e.valu(f"v_add_f32 v{vL}, v{vL}, v{vT0}", w=[R(vL)], r=[R(vL), R(vT0)])
    e.trans(f"v_rcp_f32 v{vAL}, v{vL}", w=[R(vAL)], r=[R(vL)])
    e.valu("v_bfe_u32 v2, v1, 4, 1", w=['v2'], r=['v1'])
    e.valu("v_lshlrev_b32 v2, 13, v2", w=['v2'], r=['v2'])
    e.valu("v_lshrrev_b32 v3, 5, v1", w=['v3'], r=['v1'])
    e.valu("v_lshlrev_b32 v3, 4, v3", w=['v3'], r=['v3'])
    e.valu("v_and_b32 v4, 15, v1", w=['v4'], r=['v1'])
    e.valu("v_add3_u32 v2, v2, v3, v4", w=['v2'], r=['v2', 'v3', 'v4'])
    e.valu("v_lshlrev_b32 v2, 4, v2", w=['v2'], r=['v2'])
    e.salu("s_mul_i32 s33, s31, 9"); e.salu("s_lshl_b32 s36, s37, 1"); e.salu("s_add_u32 s33, s33, s36")
    e.salu("s_lshl_b32 s33, s33, 7"); e.salu("s_lshl_b32 s36, s30, 2"); e.salu("s_add_u32 s33, s33, s36")
    e.salu("s_lshl_b32 s33, s33, 10", w=['s33'])
    for dt in range(4):
        for ip in range(2):
            b = OA + dt * 16 + ip * 8
            d = SB + (dt * 2 + ip) * 4
            for jj in range(8):
                e.valu(f"v_mul_f32 v{b+jj}, v{b+jj}, v{vAL}", w=[R(b+jj)], r=[R(b+jj), R(vAL)])
            for jj in range(4):
                e.valu(f"v_cvt_pk_bf16_f32 v{d+jj}, v{b+2*jj}, v{b+2*jj+1}", w=[R(d+jj)], r=[R(b+2*jj), R(b+2*jj+1)])
            e.bstore(d, 4, 2, 24, 33, dt * 1024 + ip * 512)
    if STAMP: e.wait_vm()
    stamp(e, 21); stamp(e, 22)
    stamp_out(e, 26)
    e.raw("    s_endpgm")
    e.raw(f"{labAux}:")
    e.vm = list(vm0); e.hist = list(h0); e.lgkm = []
    aKA, aVA, aKA0, aVA0 = 10, 14, 28, 29
    if AUXPRIO: e.salu("s_setprio 2")
    e.valu(f"v_add_u32 v5, {X80}, v8", w=['v5'], r=['v8'])
    for s in range(4):
        e.ds_read("ds_read_b128", Q8 + s * 4, 4, 5, s * 1024, 'q')
    e.valu("v_lshrrev_b32 v2, 4, v1", w=['v2'], r=['v1'])
    e.valu("v_and_b32 v3, 15, v1", w=['v3'], r=['v1'])
    e.valu("v_bfe_u32 v4, v1, 2, 2", w=['v4'], r=['v1'])
    e.valu("v_and_b32 v5, 3, v1", w=['v5'], r=['v1'])
    e.salu("s_lshl_b32 s33, s37, 4", w=['s33'])
    e.valu("v_add_u32 v6, s33, v3", w=['v6'], r=['v3', 's33'])
    e.valu("v_lshlrev_b32 v6, 8, v6", w=['v6'], r=['v6'])
    e.valu("v_xor_b32 v7, v2, v3", w=['v7'], r=['v2', 'v3'])
    e.valu("v_lshlrev_b32 v7, 4, v7", w=['v7'], r=['v7'])
    e.valu(f"v_add_u32 v{aKA0}, v6, v7", w=[R(aKA0)], r=['v6', 'v7'])
    e.valu("v_lshlrev_b32 v6, 2, v2", w=['v6'], r=['v2'])
    e.valu("v_add3_u32 v6, v6, v4, s33", w=['v6'], r=['v6', 'v4', 's33'])
    e.valu("v_lshlrev_b32 v6, 8, v6", w=['v6'], r=['v6'])
    e.valu("v_lshlrev_b32 v7, 2, v4", w=['v7'], r=['v4'])
    e.valu("v_xor_b32 v7, v7, v5", w=['v7'], r=['v7', 'v5'])
    e.valu("v_and_b32 v9, 1, v2", w=['v9'], r=['v2'])
    e.valu("v_lshlrev_b32 v9, 1, v9", w=['v9'], r=['v9'])
    e.valu("v_xor_b32 v7, v7, v9", w=['v7'], r=['v7', 'v9'])
    e.valu("v_lshlrev_b32 v7, 4, v7", w=['v7'], r=['v7'])
    e.valu(f"v_add_u32 v{aVA0}, v6, v7", w=[R(aVA0)], r=['v6', 'v7'])
    e.wait_lgkm()
    e.wait_vm(('K', 0))
    e.barrier()
    stamp(e, 11)
    dmaItem(4); dmaItem(5)
    def qk8(j):
        reg = region('K', j)
        e.valu(f"v_add_u32 v{aKA}, {reg}, v{aKA0}", w=[R(aKA)], r=[R(aKA0)])
        for s in range(1, 4):
            e.valu(f"v_xor_b32 v{aKA+s}, {s<<6}, v{aKA}", w=[R(aKA+s)], r=[R(aKA)])
        for s in range(4):
            e.ds_read("ds_read_b128", K8F + s * 4, 4, aKA + s, 0, ('k8', s))
        for s in range(4):
            e.wait_lgkm(('k8', s))
            e.mfma('16', S8, K8F + s * 4, Q8 + s * 4, cin=(0 if s == 0 else None))
        ops = []
        V_(ops, f"v_max3_f32 v{vT0}, v{S8}, v{S8+1}, v{S8+2}", [R(vT0)], vs(S8, 3))
        V_(ops, f"v_max_f32 v{vT0}, v{vT0}, v{S8+3}", [R(vT0)], [R(vT0), R(S8+3)])
        V_(ops, f"v_mov_b32 v{vT1}, v{vT0}", [R(vT1)], [R(vT0)])
        ops.append(lambda: e.ins(f"v_permlane16_swap_b32 v{vT0}, v{vT1}", 'perm', w=[R(vT0), R(vT1)], r=[R(vT0), R(vT1)]))
        V_(ops, f"v_max_f32 v{vT0}, v{vT0}, v{vT1}", [R(vT0)], [R(vT0), R(vT1)])
        V_(ops, f"v_mov_b32 v{vT1}, v{vT0}", [R(vT1)], [R(vT0)])
        ops.append(lambda: e.ins(f"v_permlane32_swap_b32 v{vT0}, v{vT1}", 'perm', w=[R(vT0), R(vT1)], r=[R(vT0), R(vT1)]))
        if j == 0:
            V_(ops, f"v_max_f32 v{vM}, v{vT0}, v{vT1}", [R(vM)], [R(vT0), R(vT1)])
            V_(ops, f"v_mul_f32 v{vMC}, s34, v{vM}", [R(vMC)], [R(vM), 's34'])
        else:
            lazy(ops, vM, vL, None, vMC, vAL, vT0, vT1, O8, 32)
        for k in range(4):
            V_(ops, f"v_fma_f32 v{S8+k}, v{S8+k}, s34, -v{vMC}", [R(S8+k)], [R(S8+k), 's34', R(vMC)])
        for k in range(4):
            T_(ops, f"v_exp_f32 v{S8+k}, v{S8+k}", [R(S8+k)], [R(S8+k)])
        for k in range(4):
            if j == 0 and k == 0:
                V_(ops, f"v_mov_b32 v{vL}, v{S8}", [R(vL)], [R(S8)])
            else:
                V_(ops, f"v_add_f32 v{vL}, v{vL}, v{S8+k}", [R(vL)], [R(vL), R(S8+k)])
        V_(ops, f"v_cvt_pk_bf16_f32 v{P8}, v{S8}, v{S8+1}", [R(P8)], [R(S8), R(S8+1)])
        V_(ops, f"v_cvt_pk_bf16_f32 v{P8+1}, v{S8+2}, v{S8+3}", [R(P8+1)], [R(S8+2), R(S8+3)])
        for o in ops: o()
    def pv8(j):
        reg = region('V', j)
        e.valu(f"v_add_u32 v{aVA}, {reg}, v{aVA0}", w=[R(aVA)], r=[R(aVA0)])
        for u in range(1, 4):
            e.valu(f"v_xor_b32 v{aVA+u}, {u<<6}, v{aVA}", w=[R(aVA+u)], r=[R(aVA)])
        for u in range(4):
            for tt in range(2):
                e.ds_read("ds_read_b64_tr_b16", V8F + (u * 2 + tt) * 2, 2, aVA + u, 8 * tt, ('v8', u, tt))
        for u in range(4):
            for tt in range(2):
                e.wait_lgkm(('v8', u, tt))
                e.mfma('16h', O8 + (u * 2 + tt) * 4, V8F + (u * 2 + tt) * 2, P8, cin=(0 if j == 0 else None))
    qk8(0)
    dmaItem(6)
    for j in range(8):
        e.wait_lgkm()
        if j < 7: e.wait_vm(('K', j + 1))
        e.wait_vm(('V', j))
        if j == 6: e.wait_vm('wo')
        if j == 6: stamp(e, 25)
        e.barrier()
        stamp(e, 12 + j)
        if 2 * j + 7 < 16: dmaItem(2 * j + 7)
        if j == 5: stamp(e, 23)
        pv8(j)
        if j < 7: qk8(j + 1)
        if j == 5: stamp(e, 24)
        if 2 * j + 8 < 16: dmaItem(2 * j + 8)
        if j == 4:
            e.salu("s_lshr_b32 s33, s2, 1"); e.salu(f"s_mul_i32 s33, s33, {32*1152}")
            e.salu("s_and_b32 s36, s2, 1"); e.salu("s_mul_i32 s36, s36, 576"); e.salu("s_add_u32 s33, s33, s36")
            e.salu(f"s_sub_u32 s58, {4096*1152}, s33")
            e.salu("s_add_u32 s56, s56, s33"); e.salu("s_addc_u32 s57, s57, 0"); e.salu("s_and_b32 s57, s57, 0xffff")
            e.salu("s_mov_b32 s59, 0x00020000")
            for i in range(5):
                e.salu("s_mul_i32 s33, s37, 5"); e.salu(f"s_add_u32 s33, s33, {i}"); e.salu("s_min_u32 s33, s33, 17")
                e.salu("s_lshl_b32 s36, s33, 6", w=['s36'])
                e.valu("v_add_u32 v2, s36, v1", w=['v2'], r=['v1', 's36'])
                e.valu("v_mul_u32_u24 v3, 0x1c72, v2", w=['v3'], r=['v2'])
                e.valu("v_lshrrev_b32 v3, 18, v3", w=['v3'], r=['v3'])
                e.valu("v_mul_u32_u24 v4, 36, v3", w=['v4'], r=['v3'])
                e.valu("v_sub_u32 v4, v2, v4", w=['v4'], r=['v2', 'v4'])
                e.valu("v_lshlrev_b32 v4, 4, v4", w=['v4'], r=['v4'])
                e.valu("v_mul_u32_u24 v3, 1152, v3", w=['v3'], r=['v3'])
                e.valu("v_add_u32 v3, v3, v4", w=['v3'], r=['v3', 'v4'])
                e.salu("s_lshl_b32 s33, s33, 10"); e.salu(f"s_add_u32 m0, s33, {6*REG}", w=['m0'])
                e.dma(3, 56, None, 'wo')
        if j == 6:
            e.valu("v_lshrrev_b32 v2, 4, v1", w=['v2'], r=['v1'])
            e.valu("v_bfe_u32 v3, v1, 2, 2", w=['v3'], r=['v1'])
            e.valu("v_lshlrev_b32 v2, 3, v2", w=['v2'], r=['v2'])
            e.valu("v_add_u32 v2, v2, v3", w=['v2'], r=['v2', 'v3'])
            e.valu("v_mul_u32_u24 v2, 576, v2", w=['v2'], r=['v2'])
            e.valu("v_and_b32 v3, 3, v1", w=['v3'], r=['v1'])
            e.valu("v_lshlrev_b32 v3, 3, v3", w=['v3'], r=['v3'])
            e.valu("v_add_u32 v2, v2, v3", w=['v2'], r=['v2', 'v3'])
            e.valu(f"v_add_u32 v2, {6*REG}, v2", w=['v2'], r=['v2'])
            WT = 140
            for i in range(5):
                e.salu(f"s_add_u32 s33, s37, {4*i}"); e.salu("s_min_u32 s33, s33, 17")
                e.salu("s_lshl_b32 s36, s33, 5", w=['s36'])
                e.valu("v_add_u32 v3, s36, v2", w=['v3'], r=['v2', 's36'])
                for part in range(2):
                    e.ds_read("ds_read_b64_tr_b16", WT + i * 4 + part * 2, 2, 3, part * 4 * 576, ('wt', i))
            e.salu("s_mov_b32 s45, s28"); e.salu("s_and_b32 s49, s29, 0xffff"); e.salu("s_mov_b32 s48, s28")
            e.salu(f"s_mov_b32 s50, {WOF0 + WOFSZ}"); e.salu("s_mov_b32 s51, 0x00020000")
            for i in range(5):
                e.salu(f"s_add_u32 s33, s37, {4*i}"); e.salu("s_min_u32 s33, s33, 17")
                e.salu("s_lshr_b32 s36, s2, 1"); e.salu("s_mul_i32 s36, s36, 36"); e.salu("s_add_u32 s33, s33, s36")
                e.salu("s_and_b32 s36, s2, 1"); e.salu("s_mul_i32 s36, s36, 18"); e.salu("s_add_u32 s33, s33, s36")
                e.salu("s_lshl_b32 s33, s33, 10"); e.salu(f"s_add_u32 s33, s33, {WOF0}", w=['s33'])
                e.wait_lgkm(('wt', i))
                e.bstore(WT + i * 4, 4, 8, 48, 33, 0, 'wst')
    e.valu(f"v_mov_b32 v{vT1}, v{vL}", w=[R(vT1)], r=[R(vL)])
    e.ins(f"v_permlane16_swap_b32 v{vL}, v{vT1}", 'perm', w=[R(vL), R(vT1)], r=[R(vL), R(vT1)])
    e.valu(f"v_add_f32 v{vL}, v{vL}, v{vT1}", w=[R(vL)], r=[R(vL), R(vT1)])
    e.valu(f"v_mov_b32 v{vT1}, v{vL}", w=[R(vT1)], r=[R(vL)])
    e.ins(f"v_permlane32_swap_b32 v{vL}, v{vT1}", 'perm', w=[R(vL), R(vT1)], r=[R(vL), R(vT1)])
    e.valu(f"v_add_f32 v{vL}, v{vL}, v{vT1}", w=[R(vL)], r=[R(vL), R(vT1)])
    OX = 8 * REG; MX = 0
    e.salu("s_lshl_b32 s33, s37, 13", w=['s33'])
    e.valu(f"v_add_u32 v2, {OX}, v8", w=['v2'], r=['v8'])
    e.valu("v_add_u32 v3, s33, v2", w=['v3'], r=['v2', 's33'])
    for T in range(8):
        e.ds_write("ds_write_b128", 3, O8 + T * 4, 4, T * 1024)
    e.valu("v_lshrrev_b32 v4, 1, v8", w=['v4'], r=['v8'])
    e.salu("s_lshl_b32 s33, s37, 9", w=['s33'])
    e.valu("v_add_u32 v5, s33, v4", w=['v5'], r=['v4', 's33'])
    e.ds_write("ds_write_b64", 5, vM, 2, MX)
    e.wait_lgkm()
    e.barrier()
    stamp(e, 20)
    ML = 128; OP = 136
    for a2 in range(4):
        e.ds_read("ds_read_b64", ML + a2 * 2, 2, 4, MX + a2 * 512, 'ml')
    e.salu("s_lshl_b32 s33, s37, 11", w=['s33'])
    e.valu("v_add_u32 v3, s33, v2", w=['v3'], r=['v2', 's33'])
    for a2 in range(4):
        for tt in range(2):
            e.ds_read("ds_read_b128", OP + (a2 * 2 + tt) * 4, 4, 3, a2 * 8192 + tt * 1024, 'op')
    e.wait_lgkm('ml')
    e.valu(f"v_max3_f32 v{vM}, v{ML}, v{ML+2}, v{ML+4}", w=[R(vM)], r=[R(ML), R(ML+2), R(ML+4)])
    e.valu(f"v_max_f32 v{vM}, v{vM}, v{ML+6}", w=[R(vM)], r=[R(vM), R(ML+6)])
    for a2 in range(4):
        e.valu(f"v_sub_f32 v{ML+2*a2}, v{ML+2*a2}, v{vM}", w=[R(ML+2*a2)], r=[R(ML+2*a2), R(vM)])
        e.valu(f"v_mul_f32 v{ML+2*a2}, s34, v{ML+2*a2}", w=[R(ML+2*a2)], r=[R(ML+2*a2), 's34'])
    for a2 in range(4):
        e.trans(f"v_exp_f32 v{ML+2*a2}, v{ML+2*a2}", w=[R(ML+2*a2)], r=[R(ML+2*a2)])
    e.valu(f"v_mul_f32 v{vL}, v{ML}, v{ML+1}", w=[R(vL)], r=[R(ML), R(ML+1)])
    for a2 in range(1, 4):
        e.valu(f"v_fma_f32 v{vL}, v{ML+2*a2}, v{ML+2*a2+1}, v{vL}", w=[R(vL)], r=[R(ML+2*a2), R(ML+2*a2+1), R(vL)])
    e.trans(f"v_rcp_f32 v{vAL}, v{vL}", w=[R(vAL)], r=[R(vL)])
    for a2 in range(4):
        e.valu(f"v_mul_f32 v{ML+2*a2}, v{ML+2*a2}, v{vAL}", w=[R(ML+2*a2)], r=[R(ML+2*a2), R(vAL)])
    e.wait_lgkm('op')
    for k in range(8):
        e.valu(f"v_mul_f32 v{OP+k}, v{OP+k}, v{ML}", w=[R(OP+k)], r=[R(OP+k), R(ML)])
        for a2 in range(1, 4):
            e.valu(f"v_fma_f32 v{OP+k}, v{OP+a2*8+k}, v{ML+2*a2}, v{OP+k}", w=[R(OP+k)], r=[R(OP+a2*8+k), R(ML+2*a2), R(OP+k)])
    for jj in range(4):
        e.valu(f"v_cvt_pk_bf16_f32 v{Q8+jj}, v{OP+2*jj}, v{OP+2*jj+1}", w=[R(Q8+jj)], r=[R(OP+2*jj), R(OP+2*jj+1)])
    e.salu("s_mul_i32 s33, s31, 9"); e.salu("s_add_u32 s33, s33, 8"); e.salu("s_lshl_b32 s33, s33, 7")
    e.salu("s_lshl_b32 s36, s30, 2"); e.salu("s_add_u32 s33, s33, s36"); e.salu("s_add_u32 s33, s33, s37")
    e.salu("s_lshl_b32 s33, s33, 10", w=['s33'])
    e.bstore(Q8, 4, 8, 24, 33, 0)
    if STAMP: e.wait_vm()
    stamp(e, 21); stamp(e, 22)
    stamp_out(e, 26)
    e.raw(f"{name}_done:")
    e.raw("    s_endpgm")
    return e.text(), 256
```
